```python
import torch

def _softmax(x, axis=-1):
    return torch.softmax(x, dim=axis)
def _gelu(x):
    return torch.nn.functional.gelu(x, approximate="tanh")
def _silu(x):
    return torch.nn.functional.silu(x)
def _sigmoid(x):
    return torch.sigmoid(x)
def _layernorm(x, axis=-1, eps=1e-5):
    m = x.mean(dim=axis, keepdim=True)
    v = x.var(dim=axis, keepdim=True, unbiased=False)
    return (x - m) / torch.sqrt(v + eps)
def _scatter_add(tgt, idx, src, axis=0):
    return tgt.clone().index_add_(axis, idx, src)
def _segment_sum(src, seg, n):
    out = torch.zeros((n,) + src.shape[1:], dtype=src.dtype)
    return out.index_add_(0, seg, src)
def _pad(x, pw):
    flat = tuple(v for pair in reversed(pw) for v in pair)
    return torch.nn.functional.pad(x, flat)

kernel_name = 'recurrent_scan__sliding_block_cached__glu_gated_geglu__decode'

def setup_inputs():

    _w = (lambda a: (lambda t: t.to(torch.bfloat16) if t.is_floating_point() else t)(torch.as_tensor(a)))
    def _A_setup():
        B, Sq, D = 4, 1, 576
        Hq, Hkv, Sk, Dh = 32, 16, 4096, 128
        assert Hq % Hkv == 0, (Hq, Hkv)
        return {
            "x": _w((lambda *s: torch.randn(*s, dtype=torch.bfloat16) * 0.2)(B, Sq, D)),
            "k_cache": _w((lambda *s: torch.randn(*s, dtype=torch.bfloat16) * 1.6)(B, Hkv, Sk, Dh)),
            "v_cache": _w((lambda *s: torch.randn(*s, dtype=torch.bfloat16) * 1.6)(B, Hkv, Sk, Dh)),
            "wq": _w((lambda *s: torch.randn(*s, dtype=torch.bfloat16) * 1.6)(D, Hq * Dh) * (D ** -0.5)),
            "wo": _w((lambda *s: torch.randn(*s, dtype=torch.bfloat16) * 1.6)(Hq * Dh, D) * ((Hq * Dh) ** -0.5)),
        }
    _A_in = _A_setup()

    def _B_setup():
        B, S, Dm, Df = 4, 1, 576, 4608
        return {
            "x": _w((lambda *s: torch.randn(*s, dtype=torch.bfloat16) * 0.2)(B, S, Dm)),
            "w_gate": _w((lambda *s: torch.randn(*s, dtype=torch.bfloat16) * 0.8)(Dm, Df) * (Dm ** -0.5)),
            "w_up": _w((lambda *s: torch.randn(*s, dtype=torch.bfloat16) * 0.8)(Dm, Df) * (Dm ** -0.5)),
            "w_down": _w((lambda *s: torch.randn(*s, dtype=torch.bfloat16) * 0.8)(Df, Dm) * (Df ** -0.5)),
        }
    _B_in = _B_setup()

    return {
        "A_x": _A_in["x"],
        "A_k_cache": _A_in["k_cache"],
        "A_v_cache": _A_in["v_cache"],
        "A_wq": _A_in["wq"],
        "A_wo": _A_in["wo"],
        "B_x": _B_in["x"],
        "B_w_gate": _B_in["w_gate"],
        "B_w_up": _B_in["w_up"],
        "B_w_down": _B_in["w_down"],
    }

def reference(A_x, A_k_cache, A_v_cache, A_wq, A_wo, B_x, B_w_gate, B_w_up, B_w_down):
    def _A_ref(x, k_cache, v_cache, wq, wo):
        B, Sq, D = x.shape
        Hq, Dh = 32, 128
        Hkv, Sk = k_cache.shape[1], k_cache.shape[2]
        W = min(4096, max(256, Sk // 4))
        rep = Hq // Hkv
        q = (lambda x, *d: x.permute(*d))((x @ wq).reshape(B, Sq, Hq, Dh), 0, 2, 1, 3)
        k = (lambda x, n, axis: torch.repeat_interleave(x, n, dim=axis))(k_cache[:, :, Sk - W:, :], rep, axis=1)
        v = (lambda x, n, axis: torch.repeat_interleave(x, n, dim=axis))(v_cache[:, :, Sk - W:, :], rep, axis=1)
        scores = torch.einsum("bhqd,bhkd->bhqk", q, k) * (Dh ** -0.5)
        p = _softmax(scores, axis=-1)
        o = torch.einsum("bhqk,bhkd->bhqd", p, v)
        return (lambda x, *d: x.permute(*d))(o, 0, 2, 1, 3).reshape(B, Sq, Hq * Dh) @ wo

    def _B_ref(x, w_gate, w_up, w_down):
        g = torch.einsum("bsd,df->bsf", x, w_gate)
        u = torch.einsum("bsd,df->bsf", x, w_up)
        h = _gelu(g) * u
        return torch.einsum("bsf,fd->bsd", h, w_down)

    x = A_x
    xn = _layernorm(x, axis=-1)
    s = _A_ref(xn, A_k_cache, A_v_cache, A_wq, A_wo)
    g = _silu(_B_ref(xn, B_w_gate, B_w_up, B_w_down))
    return x + s * g
```

```python
KNAME = "recurrent_scan__sliding_block_cached__glu_gated_geglu__decode"

HEADER = """; Kernarg layout (96 bytes, ptrs only, base s[0:1]):
"""

SZ = dict(x=4*576*2, k=4*16*4096*128*2, v=4*16*4096*128*2, wq=576*4096*2, wo=4096*576*2,
          bx=4*576*2, wg=576*4608*2, wu=576*4608*2, wd=4608*576*2, out=4*576*2, dbg=256, ws=268435456)
OFF = dict(x=0, k=8, v=16, wq=24, wo=32, bx=40, wg=48, wu=56, wd=64, out=72, dbg=80, ws=88)

class Asm:
    def __init__(self):
        self.lines = []
        self.uid = 0
    def __call__(self, s=""):
        for l in s.split("\n"):
            self.lines.append("    " + l.strip() if l.strip() and not l.strip().endswith(":") else l.strip())
    def label(self, name):
        self.lines.append(name + ":")
    def newlabel(self, p="L"):
        self.uid += 1
        return f"{p}_{self.uid}"
    def text(self):
        return "\n".join(self.lines) + "\n"

def kernel_begin(name):
    return f""".globl {name}
.p2align 8
.type {name},@function
{name}:
"""

def kernel_desc(name, vgpr, sgpr=102, accum=None, extra=""):
    if accum is None:
        accum = min(256, (vgpr + 3) // 4 * 4)
    return f""".section .rodata,"a"
.p2align 6
.amdhsa_kernel {name}
  .amdhsa_next_free_vgpr {vgpr}
  .amdhsa_next_free_sgpr {sgpr}
  .amdhsa_accum_offset {accum}
  .amdhsa_group_segment_fixed_size 0
  .amdhsa_kernarg_size 96
  .amdhsa_user_sgpr_count 2
  .amdhsa_user_sgpr_kernarg_segment_ptr 1
  .amdhsa_system_sgpr_workgroup_id_x 1
{extra}.end_amdhsa_kernel
.text
"""

def file_begin():
    return '.amdgcn_target "amdgcn-amd-amdhsa--gfx950"\n.text\n'
```

```python
import re

TRANS = ("v_exp_f32","v_log_f32","v_rcp_f32","v_rsq_f32","v_sqrt_f32","v_sin_f32","v_cos_f32","v_rcp_iflag_f32")

def regs_of(tok):
    tok = tok.strip()
    tok = tok.lstrip("-")
    if tok.startswith("abs(") and tok.endswith(")"): tok = tok[4:-1]
    if tok.startswith("|") and tok.endswith("|"): tok = tok[1:-1]
    m = re.fullmatch(r"([vsa])(\d+)", tok)
    if m: return {(m.group(1), int(m.group(2)))}
    m = re.fullmatch(r"([vsa])\[(\d+):(\d+)\]", tok)
    if m: return {(m.group(1), i) for i in range(int(m.group(2)), int(m.group(3)) + 1)}
    if tok == "vcc": return {("s", 106), ("s", 107)}
    if tok == "vcc_lo": return {("s", 106)}
    if tok == "vcc_hi": return {("s", 107)}
    if tok == "exec": return {("s", 126), ("s", 127)}
    if tok == "m0": return {("s", 124)}
    return set()

class I:
    def __init__(self, line):
        self.line = line
        s = line.split(";")[0].split("//")[0].strip()
        self.is_label = s.endswith(":")
        self.empty = (s == "" or s.startswith(".") or self.is_label)
        self.op = ""; self.dst = set(); self.src = set(); self.ws = 0
        self.cls = None
        if self.empty: return
        parts = s.split(None, 1)
        op = parts[0]; self.op = op
        rest = parts[1] if len(parts) > 1 else ""
        toks = [t.strip() for t in rest.split(",")] if rest else []
        mods = ""
        if toks:
            sp = toks[-1].split(None, 1)
            toks[-1] = sp[0]
            if len(sp) > 1: mods = sp[1]
        toks2 = [];
        for t in toks:
            sp = t.split(None, 1)
            toks2.append(sp[0])
            if len(sp) > 1: mods += " " + sp[1]
        toks = toks2
        self.mods = rest
        self.ws = 1
        R = [regs_of(t) for t in toks]
        self.dpp = ("_dpp" in op) or ("quad_perm" in rest) or ("row_" in rest)
        self.sdwa_part = ("_sdwa" in op) and ("dst_sel:DWORD" not in rest) and ("dst_sel" in rest)
        if op == "s_nop":
            self.cls = "nop"; self.ws = int(toks[0], 0) + 1
        elif op.startswith("v_mfma"):
            self.cls = "mfma"
            self.dst = R[0]; self.a = R[1]; self.b = R[2]; self.c = R[3]
            self.src = R[1] | R[2] | R[3]
            if "16x16x32" in op or "16x16x16" in op: self.passes = 4
            elif "32x32x16" in op or "32x32x8" in op: self.passes = 8
            elif "4x4x4" in op: self.passes = 2
            else: raise Exception("unknown mfma " + op)
        elif op.startswith("v_"):
            self.cls = "valu"
            base = op.replace("_e32","").replace("_e64","").replace("_dpp","").replace("_sdwa","")
            self.base = base
            if base.startswith("v_cmp"):
                self.dst = R[0]; self.src = set().union(*R[1:])
            elif base.startswith("v_permlane"):
                self.dst = R[0] | R[1]; self.src = R[0] | R[1]
            elif base in ("v_add_co_u32","v_sub_co_u32","v_addc_co_u32","v_subb_co_u32"):
                self.dst = R[0] | R[1]; self.src = set().union(*R[2:])
            elif base == "v_nop":
                pass
            else:
                self.dst = R[0]; self.src = set().union(*R[1:]) if len(R) > 1 else set()
                if base in ("v_fmac_f32","v_dot2c_f32_bf16","v_writelane_b32") or self.dpp or self.sdwa_part:
                    self.src |= R[0]
            self.dppsrc = R[1] if self.dpp else set()
            self.lanesel = R[2] if base in ("v_readlane_b32","v_writelane_b32") else set()
        elif op.startswith(("buffer_","global_","flat_")):
            self.cls = "vmem"
            allr = set().union(*R) if R else set()
            if "load" in op and " lds" not in rest:
                self.dst = R[0]; self.src = set().union(*R[1:])
                self.sdata = set()
            elif op.startswith("buffer_store") or op.startswith("buffer_atomic"):
                self.src = allr; self.sdata = R[0]
            elif "store" in op or "atomic" in op:
                self.src = allr; self.sdata = R[1]
            else:
                self.src = allr; self.sdata = set()
            self.wide = ("x3" in op or "x4" in op) and "store" in op
        elif op.startswith("ds_"):
            self.cls = "ds"
            if "read" in op or "permute" in op or "swizzle" in op:
                self.dst = R[0]; self.src = set().union(*R[1:])
            else:
                self.src = set().union(*R)
        elif op.startswith("s_"):
            self.cls = "salu"
            if op.startswith(("s_cmp","s_cbranch","s_branch","s_waitcnt","s_barrier","s_endpgm","s_setprio","s_sleep","s_bitcmp")):
                self.src = set().union(*R) if R else set()
            else:
                self.dst = R[0] if R else set(); self.src = set().union(*R[1:]) if len(R) > 1 else set()
        else:
            raise Exception("unknown op " + line)

def V(s): return {r for r in s if r[0] in "va"}
def S(s): return {r for r in s if r[0] == "s"}

def need(p, c):
    n = 0
    if p.cls == "valu":
        vd = V(p.dst); sd = S(p.dst)
        if c.cls == "mfma" and vd & c.src: n = max(n, 2)
        if c.cls == "valu":
            if c.dpp and vd & c.dppsrc: n = max(n, 2)
            if p.base in TRANS and c.base not in TRANS and vd & c.src: n = max(n, 1)
            if c.base in ("v_readlane_b32","v_readfirstlane_b32") and vd & c.src: n = max(n, 1)
            if c.base.startswith("v_permlane") and vd & c.src: n = max(n, 2)
            if sd & c.lanesel: n = max(n, 4)
            if sd & S(c.src): n = max(n, 2)
            if p.sdwa_part and vd & (c.src | c.dst): n = max(n, 1)
        if c.cls == "vmem" and sd & S(c.src): n = max(n, 5)
        if p.base in TRANS and c.cls in ("vmem","ds") and vd & c.src: n = max(n, 1)
        if p.sdwa_part and c.cls in ("vmem","ds") and vd & c.src: n = max(n, 1)
    if p.cls == "mfma":
        tab = {2: 5, 4: 8, 8: 12}[p.passes]
        if c.cls == "mfma":
            if p.dst & (c.a | c.b): n = max(n, tab)
            if p.dst & c.c:
                if p.dst == c.c and p.passes == c.passes: n = max(n, 2 if p.passes == 2 else 0)
                else: n = max(n, {2: 4, 4: 6, 8: 10}[p.passes])
            elif p.dst & c.dst:
                n = max(n, tab)
        elif c.cls in ("valu","vmem","ds"):
            if p.dst & (c.src | c.dst): n = max(n, tab)
            if c.cls == "valu" and p.c & c.dst: n = max(n, {2: 1, 4: 3, 8: 7}[p.passes])
    if p.cls == "vmem" and getattr(p, "wide", False):
        if p.sdata & c.dst: n = max(n, 2 if c.cls in ("valu","mfma") else 1)
    if p.cls == "salu" and ("s",124) in p.dst and c.cls == "vmem" and " lds" in c.mods: n = max(n, 1)
    return n

def fix(text, verbose=False):
    lines = text.split("\n")
    changed = True
    total = 0
    while changed:
        changed = False
        ins = [I(l) for l in lines]
        labels = {x.line.split(";")[0].strip()[:-1]: k for k, x in enumerate(ins) if x.is_label}
        preds = {k: [] for k in range(len(ins))}
        for k, x in enumerate(ins):
            if k + 1 < len(ins) and not (x.op in ("s_branch","s_endpgm","s_setpc_b64")):
                preds[k+1].append(k)
            if x.op.startswith(("s_branch","s_cbranch")):
                t = x.line.split(";")[0].split()[1]
                preds[labels[t]].append(k)
        for k, c in enumerate(ins):
            if c.empty or c.cls in ("nop",): continue
            worst = 0
            stack = [(q, 0) for q in preds[k]]
            seen = {}
            while stack:
                q, d = stack.pop()
                if d >= 20: continue
                if q in seen and seen[q] <= d: continue
                seen[q] = d
                p = ins[q]
                if not p.empty:
                    n = need(p, c)
                    if n - d > worst: worst = n - d; wp = p
                for qq in preds[q]:
                    stack.append((qq, d + p.ws))
            if worst > 0:
                if verbose: print(f"hazard: +{worst} before [{c.line.strip()}] after [{wp.line.strip()}]")
                lines.insert(k, f"    s_nop {worst-1}")
                total += 1
                changed = True
                break
    return "\n".join(lines), total
```

```python
import sys, math, struct
from common import *
import hazard

def f2u(x): return struct.unpack("<I", struct.pack("<f", x))[0]
def hx(x): return f"0x{f2u(x):08x}"

SB  = 0x10000
STB = 0x50000
OB  = 0x60000
PB  = 0xA0000
WS_USED = 0x100000
STAMP = 128 << 20
L_LN = 0; L_M = 512; L_L = 576; L_R2 = 1024; L_R4 = L_R2 + 8192; L_R5 = L_R4 + 8192; L_END = L_R5 + 8192

LOG2E = 1.4426950408889634
SCALE = 128 ** -0.5

def gen(fname, policy="nt", stamps=False, prefetch=True, spin=20000):
    a = Asm()
    name = KNAME + "_kernel"
    P = policy
    sTag = "s32"; sX = "s33"; sJ = "s34"; sW = "s3"
    T = ["s32", "s37", "s38", "s39"]
    sSelLo = "s40"; sSelHi = "s41"
    sKV = "s42"
    sS = "s43"
    sStr = "s44"
    sT = "s45"
    sAux0 = "s46"; sAux1 = "s47"
    sQ = "s48"
    sPubS = "s49"
    sPubP = "s50"
    sOG = "s51"
    sType = "s52"
    sU = "s53"
    sCnt = "s54"
    sM = "s55"
    t0, t1, t2, t3 = "s56", "s57", "s58", "s59"
    nst = [0]
    def stamp(i):
        if stamps:
            a(f"s_memrealtime s[{60+2*i}:{61+2*i}]")
            nst[0] = max(nst[0], i + 1)
    vL = "v0"; vS = "v1"; vT = "v2"; vK = "v3"; vV = "v4"; vM0 = "v5"; vM1 = "v6"
    vAux = "v7"; vOG = "v8"; vPM = [f"v{9+i}" for i in range(4)]; vFF = "v13"; vA = "v14"; vB = "v15"
    SD = 16; KD = 48; VD = 80; ACC = 112; WT = 128; XO = 144; TM = 152
    def v(i): return f"v{i}"
    def vr(i, n): return f"v[{i}:{i+n-1}]"

    if stamps:
        for i in range(60, 92, 2): a(f"s_mov_b64 s[{i}:{i+1}], 0")
    stamp(0)
    a("s_cmp_ge_u32 s2, 256")
    a("s_cbranch_scc1 L_end")
    a(f"s_and_b32 {sX}, s2, 7")
    a(f"s_lshr_b32 {sJ}, s2, 3")
    a(f"s_cmp_lt_u32 {sJ}, 17")
    a(f"s_cselect_b32 {t0}, 48, 56")
    a(f"s_cselect_b32 {t2}, 8, 17")
    a(f"s_cmp_lt_u32 {sJ}, 8")
    a(f"s_cselect_b32 {t0}, 24, {t0}")
    a(f"s_load_dwordx2 s[4:5], s[0:1], {t0}")
    a("s_load_dwordx2 s[24:25], s[0:1], 0")
    a("s_load_dwordx2 s[8:9], s[0:1], 8")
    a("s_load_dwordx2 s[20:21], s[0:1], 88")
    a(f"s_sub_u32 {t1}, {sJ}, 8")
    a(f"s_cmp_lt_u32 {t1}, 18")
    a(f"s_cselect_b32 {t1}, 32, 64")
    a(f"s_cselect_b32 s18, 8, 9")
    a(f"s_mul_i32 s18, s18, 589824")
    a(f"s_load_dwordx2 s[16:17], s[0:1], {t1}")
    a("s_load_dwordx2 s[12:13], s[0:1], 16")
    a("s_load_dwordx2 s[28:29], s[0:1], 72")
    a("v_lshrrev_b32 v1, 6, v0")
    a("v_and_b32 v0, 63, v0")
    a("v_readfirstlane_b32 s3, v1")
    a(f"s_cmp_lt_u32 {sJ}, 8")
    a(f"s_cselect_b32 {t0}, 8, 9")
    a(f"s_cselect_b32 {t2}, 0, {t2}")
    a(f"s_lshl_b32 {sStr}, {t0}, 10")
    a(f"s_mul_i32 s6, {t0}, 589824")
    a(f"s_mul_i32 {t0}, {t0}, {sX}")
    a(f"s_add_u32 {t0}, {t0}, {sJ}")
    a(f"s_sub_u32 {t0}, {t0}, {t2}")
    a(f"s_lshl_b32 {t3}, {t2}, 3")
    a(f"s_add_u32 {t3}, {t3}, {t0}")
    a(f"s_lshl_b32 {sPubS}, {t3}, 10")
    a(f"s_add_u32 {sPubS}, {sPubS}, {SB}")
    a(f"s_lshl_b32 {t0}, {t0}, 7")
    a(f"s_lshl_b32 {t1}, {sW}, 5")
    a(f"s_mul_i32 {sS}, {t1}, {sStr}")
    a(f"s_add_u32 {sS}, {sS}, {t0}")
    for r in (7, 11, 15, 19, 23, 27, 31): a(f"s_mov_b32 s{r}, 0x20000")
    a(f"s_mov_b32 s26, {SZ['x']}")
    a(f"v_lshrrev_b32 {vA}, 4, {vL}")
    a(f"v_bfe_u32 {vB}, {vL}, 1, 1")
    a(f"v_lshl_add_u32 {vB}, {vB}, 2, {vA}")
    a(f"v_bfe_u32 v16, {vL}, 2, 2")
    a(f"v_and_b32 v17, 1, {vL}")
    a(f"v_lshl_add_u32 v16, v16, 1, v17")
    a(f"v_lshlrev_b32 v16, 4, v16")
    a(f"s_lshl_b32 {t0}, {sStr}, 2")
    a(f"v_mad_u32_u24 {vS}, {vB}, {t0}, v16")
    a(f"v_mul_u32_u24 {vT}, {4*1152}, {vB}")
    a(f"v_add_u32 {vT}, {vT}, v16")
    a(f"v_bfe_u32 v18, {vL}, 3, 1")
    a(f"v_lshl_add_u32 v18, v18, 2, {vA}")
    a(f"v_bfe_u32 v19, {vL}, 1, 2")
    a(f"v_mul_u32_u24 v20, 1152, v19")
    a(f"v_mul_u32_u24 v21, 576, v17")
    a(f"v_lshlrev_b32 v22, 3, v18")
    a(f"v_add3_u32 v20, v20, v21, v22")
    a(f"s_lshl_b32 {t1}, {sW}, 6")
    a(f"s_cmp_ge_u32 {sJ}, 26")
    a("s_waitcnt lgkmcnt(0)")
    a(f"s_load_dword {sTag}, s[20:21], 0")
    a("s_cbranch_scc1 L_nostrip_issue")
    a(f"buffer_load_dwordx2 {vr(TM,2)}, v20, s[24:27], {t1} offen")
    a(f"v_mov_b32 {v(TM+2)}, v17")
    a(f"v_mov_b32 {v(TM+3)}, v18")
    a(f"v_mov_b32 {v(TM+4)}, v19")
    for i in range(8):
        a(f"buffer_load_dwordx4 {vr(SD+4*i,4)}, {vS}, s[4:7], {sS} offen {P}")
        if i == 3:
            a(f"s_mul_i32 {t0}, {sStr}, 285")
            a(f"s_add_u32 {sS}, {sS}, {t0}")
        elif i < 7:
            a(f"s_add_u32 {sS}, {sS}, {sStr}")
    a("s_branch L_setup2")
    a("L_nostrip_issue:")
    a(f"v_mov_b32 {v(TM+2)}, v17")
    a(f"v_mov_b32 {v(TM+3)}, v18")
    a(f"v_mov_b32 {v(TM+4)}, v19")
    a("L_setup2:")
    vSel = v(TM+2); vKG = v(TM+3); vBb = v(TM+4)
    a(f"s_mov_b32 s22, {SZ['ws']}")
    a(f"s_mov_b32 s30, {SZ['out']}")
    a(f"s_cmp_eq_u32 {sW}, 8")
    a(f"s_cselect_b32 s10, 0, {SZ['k']}")
    a(f"s_mov_b32 s14, {SZ['v']}")
    a(f"s_mov_b32 {sSelLo}, 0x05040100")
    a(f"s_mov_b32 {sSelHi}, 0x07060302")
    a(f"s_mov_b32 {sM}, 0xffffff00")
    a(f"s_lshl_b32 {sU}, {sX}, 5")
    a(f"s_add_u32 {sU}, {sU}, {sJ}")
    a(f"s_lshr_b32 {t0}, {sU}, 4")
    a(f"s_bfe_u32 {t1}, {sJ}, 0x20002")
    a(f"s_lshl_b32 {sQ}, {t0}, 12")
    a(f"s_lshl_b32 {t2}, {t1}, 5")
    a(f"s_add_u32 {sQ}, {sQ}, {t2}")
    a(f"s_add_u32 {sQ}, {sQ}, {SB}")
    a(f"s_lshl_b32 {t1}, {t1}, 4")
    a(f"s_add_u32 {t0}, {t0}, {t1}")
    a(f"s_lshl_b32 {sKV}, {t0}, 20")
    a(f"s_and_b32 {t0}, {sJ}, 3")
    a(f"s_lshl_b32 {t0}, {t0}, 3")
    a(f"s_and_b32 {t1}, {sW}, 7")
    a(f"s_add_u32 {t0}, {t0}, {t1}")
    a(f"s_lshl_b32 {t0}, {t0}, 13")
    a(f"s_add_u32 {sKV}, {sKV}, {t0}")
    a(f"s_add_u32 {sKV}, {sKV}, {768*1024}")
    a(f"v_bfe_u32 {vK}, {vL}, 2, 2")
    a(f"v_lshlrev_b32 {vK}, 8, {vK}")
    a(f"v_lshl_add_u32 {vK}, {vA}, 6, {vK}")
    a(f"v_and_b32 {vB}, 3, {vL}")
    a(f"v_lshl_add_u32 {vK}, {vB}, 4, {vK}")
    a(f"v_lshlrev_b32 {vV}, 4, {vL}")
    a(f"v_subrev_u32 {vM0}, 1, {vSel}")
    a(f"v_not_b32 {vM1}, {vM0}")
    a(f"v_mov_b32 {vFF}, 0xff")
    a(f"s_sub_u32 {t0}, {sJ}, 8")
    a(f"s_cmp_lt_u32 {t0}, 18")
    a("s_cbranch_scc1 L_type_wo")
    a(f"s_lshr_b32 {t0}, {sJ}, 1")
    a(f"s_add_u32 {t0}, {t0}, 5")
    a(f"s_sub_u32 {t1}, {sJ}, 26")
    a(f"s_and_b32 {t2}, {sJ}, 1")
    a(f"s_cmp_lt_u32 {sJ}, 8")
    a(f"s_cselect_b32 {t0}, {t0}, {t1}")
    a(f"s_cselect_b32 {t2}, {t2}, 0")
    a(f"s_cselect_b32 {sType}, 0, 2")
    a(f"s_cselect_b32 {t3}, 0, {36*128}")
    a(f"s_cmp_eq_u32 {sJ}, 31")
    a(f"s_cselect_b32 {sType}, 3, {sType}")
    a(f"s_cselect_b32 s18, 0, s18")
    a(f"v_lshrrev_b32 {vAux}, 1, {vKG}")
    a(f"v_lshlrev_b32 {vAux}, 7, {vAux}")
    a(f"v_lshl_add_u32 {vAux}, {vBb}, 5, {vAux}")
    a(f"v_and_b32 {vB}, 1, {vKG}")
    a(f"v_lshl_add_u32 {vAux}, {vB}, 4, {vAux}")
    a(f"v_mad_u32_u24 {vAux}, {vSel}, {t3}, {vAux}")
    a(f"v_mov_b32 {vOG}, 0")
    a(f"s_mov_b32 {sOG}, 0")
    a(f"s_lshl_b32 {t1}, {sX}, 1")
    a(f"s_add_u32 {t1}, {t1}, {t2}")
    a(f"s_mul_i32 {t3}, {t1}, 9")
    a(f"s_add_u32 {t3}, {t3}, {sW}")
    a(f"s_lshl_b32 {sAux0}, {t3}, 9")
    a(f"s_add_u32 {sAux0}, {sAux0}, {SB + 64*1024}")
    a(f"s_add_u32 {sAux1}, {sAux0}, {72*1024}")
    a(f"s_lshl_b32 {t2}, {t2}, 3")
    a(f"s_add_u32 {t2}, {t2}, {sX}")
    a(f"s_add_u32 {t2}, {t2}, 16")
    a("s_branch L_type_done")
    a("L_type_wo:")
    a(f"s_cmp_ge_u32 {t0}, 9")
    a(f"s_cselect_b32 {t1}, 9, 0")
    a(f"s_cselect_b32 {t2}, 1, 0")
    a(f"s_sub_u32 {t0}, {t0}, {t1}")
    a(f"s_lshl_b32 {t1}, {sX}, 1")
    a(f"s_add_u32 {t2}, {t2}, {t1}")
    a(f"s_mov_b32 {sType}, 1")
    a(f"v_lshl_add_u32 {vB}, {vBb}, 1, {vSel}")
    a(f"v_lshlrev_b32 {vAux}, 8, {vB}")
    a(f"v_lshlrev_b32 {vOG}, 11, {vB}")
    a(f"v_lshl_add_u32 {vOG}, {vKG}, 4, {vOG}")
    a(f"s_lshl_b32 {sAux0}, {t2}, 11")
    a(f"s_bfe_u32 {t1}, {sW}, 0x10002")
    a(f"s_lshl_b32 {t1}, {t1}, 4")
    a(f"s_add_u32 {sAux0}, {sAux0}, {t1}")
    a(f"s_add_u32 {sAux0}, {sAux0}, {STB}")
    a(f"s_add_u32 {sAux1}, {sAux0}, 128")
    a(f"s_lshl_b32 {sOG}, {t2}, 14")
    a(f"s_lshl_b32 {t1}, {sW}, 7")
    a(f"s_add_u32 {sOG}, {sOG}, {t1}")
    a(f"s_add_u32 {sOG}, {sOG}, {OB}")
    a(f"s_lshl_b32 {t3}, {t2}, 3")
    a(f"s_add_u32 {t3}, {t3}, {sW}")
    a("L_type_done:")
    a(f"s_mul_i32 {sT}, {t3}, {32*1152}")
    a(f"s_lshl_b32 {t1}, {t0}, 7")
    a(f"s_add_u32 {sT}, {sT}, {t1}")
    a(f"s_lshl_b32 {t0}, {t0}, 5")
    a(f"s_add_u32 {t0}, {t0}, {t2}")
    a(f"s_lshl_b32 {sPubP}, {t0}, 10")
    a(f"s_add_u32 {sPubP}, {sPubP}, {PB}")
    a(f"v_and_b32 {vB}, 1, {vL}")
    a(f"v_lshlrev_b32 {vB}, 4, {vB}")
    a(f"v_mov_b32 {v(TM+5)}, 0xffff")
    a(f"v_lshlrev_b32 {vB}, {vB}, {v(TM+5)}")
    for t in range(4):
        a(f"v_cmp_eq_u32 vcc, {t}, {vBb}")
        a(f"v_cndmask_b32 {vPM[t]}, 0, {vB}, vcc")
    a("s_waitcnt lgkmcnt(0)")
    a(f"s_mul_i32 {sTag}, {sTag}, 1664525")
    a(f"s_add_u32 {sTag}, {sTag}, 1013904223")
    for k in (1, 2, 3): a(f"s_lshr_b32 {T[k]}, {sTag}, {8*k}")

    def kload(i): a(f"buffer_load_dwordx4 {vr(KD+4*i,4)}, {vK}, s[8:11], {sKV if i<4 else t3} offen offset:{(i&3)*1024} {P}")
    def vload(i): a(f"buffer_load_dwordx4 {vr(VD+4*i,4)}, {vV}, s[12:15], {sKV if i<4 else t3} offen offset:{(i&3)*1024} {P}")
    def tload(i, so): a(f"buffer_load_dwordx4 {vr(SD+4*i,4)}, {vT}, s[16:19], {so} offen offset:{(i&3)*1152} {P}")
    def perms(src, dst):
        for m in range(4):
            for hh in range(2):
                j = m + 4*hh
                for pr in range(2):
                    lo = src + 8*pr + (j >> 1); hi = lo + 4
                    a(f"v_perm_b32 {v(dst+4*m+2*hh+pr)}, {v(hi)}, {v(lo)}, {sSelHi if j&1 else sSelLo}")
    def mfmas(wsrc, xo, first):
        for m in range(4):
            c = "0" if first else vr(ACC+4*m, 4)
            a(f"v_mfma_f32_16x16x32_bf16 {vr(ACC+4*m,4)}, {vr(wsrc+4*m,4)}, {vr(xo,4)}, {c}")
    def densify(dst):
        for m in range(4):
            a(f"v_add_f32_dpp {v(dst+m)}, {v(ACC+4*m+2)}, {v(ACC+4*m)} row_ror:8 row_mask:0xf bank_mask:0x3")
        for m in range(4):
            a(f"v_add_f32_dpp {v(dst+m)}, {v(ACC+4*m+1)}, {v(ACC+4*m+3)} row_ror:8 row_mask:0xf bank_mask:0xc")
    def xoperands(p01, p23, units):
        for u in units:
            qp = "[0,0,2,2]" if u == 0 else "[1,1,3,3]"
            for k, (src, mk) in enumerate(((p01, vM0), (p23, vM0), (p01, vM1), (p23, vM1))):
                a(f"v_and_b32_dpp {v(XO+4*u+k)}, {src}, {mk} quad_perm:{qp} row_mask:0xf bank_mask:0xf")
    def tagcheck(base, n, acc):
        a(f"v_xor_b32 {acc}, {T[0]}, {v(base)}")
        for k in range(1, n):
            a(f"v_bitop3_b32 {acc}, {acc}, {v(base+k)}, {T[k&3]} bitop3:0xf6")
        a(f"v_and_b32 {acc}, 0xff, {acc}")
        a(f"v_cmp_ne_u32 vcc, 0, {acc}")
    def addtags(base):
        for k in range(4):
            a(f"v_bfi_b32 {v(base+k)}, {vFF}, {T[k]}, {v(base+k)}")
    def rnd(d, s): a(f"v_cvt_pk_bf16_f32 {d}, 0, {s}")

    a(f"s_add_u32 {t3}, {sKV}, 4096")
    a(f"s_cmp_ge_u32 {sJ}, 26")
    a("s_cbranch_scc0 L_ln")
    if prefetch:
        a(f"s_cmp_lg_u32 {sW}, 8")
        a("s_cbranch_scc1 L_nopf")
        a("s_getpc_b64 s[92:93]")
        a(f"v_lshlrev_b32 {vB}, 7, {vL}")
        a(f"v_min_u32 {vB}, (L_end - L_ln) & 0xfffffffc, {vB}")
        a(f"global_load_dword {vB}, {vB}, s[92:93]")
        a("L_nopf:")
    a(f"s_add_u32 {t0}, {sT}, {288*1152}")
    for i in range(4, 8): tload(i, t0)
    for i in range(8): kload(i)
    a(f"s_cmp_eq_u32 {sW}, 8")
    a("s_cbranch_scc1 L_pub_mid")
    a("s_branch L_attn")

    a("L_ln:")
    a("s_waitcnt vmcnt(8)")
    stamp(1)
    X = TM + 8
    a(f"v_lshlrev_b32 {v(X)}, 16, {v(TM)}")
    a(f"v_and_b32 {v(X+1)}, 0xffff0000, {v(TM)}")
    a(f"v_lshlrev_b32 {v(X+2)}, 16, {v(TM+1)}")
    a(f"v_and_b32 {v(X+3)}, 0xffff0000, {v(TM+1)}")
    a(f"v_add_f32 {vA}, {v(X)}, {v(X+1)}")
    a(f"v_mul_f32 {vB}, {v(X)}, {v(X)}")
    a(f"v_add_f32 {vA}, {vA}, {v(X+2)}")
    a(f"v_fmac_f32 {vB}, {v(X+1)}, {v(X+1)}")
    a(f"v_add_f32 {vA}, {vA}, {v(X+3)}")
    a(f"v_fmac_f32 {vB}, {v(X+2)}, {v(X+2)}")
    a(f"v_fmac_f32 {vB}, {v(X+3)}, {v(X+3)}")
    a(f"v_mul_u32_u24 {v(TM)}, 80, {vBb}")
    a(f"v_lshrrev_b32 {v(TM+1)}, 5, {vL}")
    a(f"v_permlane32_swap_b32 {vA}, {vB}")
    a(f"v_add_f32 {vA}, {vA}, {vB}")
    a(f"v_lshl_add_u32 {v(TM+1)}, {v(TM+1)}, 2, {v(TM)}")
    a(f"s_lshl_b32 {t0}, {sW}, 3")
    a(f"v_add_f32_dpp {vA}, {vA}, {vA} quad_perm:[1,0,3,2] row_mask:0xf bank_mask:0xf")
    a(f"v_add_u32 {v(TM+1)}, {t0}, {v(TM+1)}")
    a(f"v_add_f32_dpp {vA}, {vA}, {vA} row_ror:8 row_mask:0xf bank_mask:0xf")
    a(f"v_mov_b32 {vB}, {vA}")
    a(f"v_permlane16_swap_b32 {vA}, {vB}")
    a(f"v_add_f32 {vA}, {vA}, {vB}")
    a(f"ds_write_b32 {v(TM+1)}, {vA} offset:{L_LN}")
    a("s_waitcnt lgkmcnt(0)")
    a("s_barrier")
    for i in range(4): a(f"ds_read_b128 {vr(ACC+4*i,4)}, {v(TM)} offset:{L_LN+16*i}")
    a(f"ds_read_b64 {vr(ACC+16,2)}, {v(TM)} offset:{L_LN+64}")
    a("s_waitcnt lgkmcnt(0)")
    for i in range(1, 9): a(f"v_pk_add_f32 {vr(ACC,2)}, {vr(ACC,2)}, {vr(ACC+2*i,2)}")
    a(f"v_mul_f32 {vA}, {hx(1/576)}, {v(ACC)}")
    a(f"v_mul_f32 {vB}, {hx(1/576)}, {v(ACC+1)}")
    a(f"v_fma_f32 {vB}, -{vA}, {vA}, {vB}")
    a(f"v_max_f32 {vB}, 0, {vB}")
    rnd(vA, vA); rnd(vB, vB)
    a(f"v_add_f32 {vB}, {hx(1e-5)}, {vB}")
    rnd(vB, vB)
    a(f"v_sqrt_f32 {vB}, {vB}")
    for i in range(4): a(f"v_sub_f32 {v(X+i)}, {v(X+i)}, {vA}")
    rnd(vB, vB)
    a(f"v_rcp_f32 {vB}, {vB}")
    for i in range(4): rnd(v(X+i), v(X+i))
    for i in range(4): a(f"v_mul_f32 {v(X+i)}, {v(X+i)}, {vB}")
    a(f"v_cvt_pk_bf16_f32 {v(TM)}, {v(X)}, {v(X+1)}")
    a(f"v_cvt_pk_bf16_f32 {v(TM+1)}, {v(X+2)}, {v(X+3)}")
    xoperands(v(TM), v(TM+1), (0, 1))
    stamp(2)
    a("s_waitcnt vmcnt(4)")
    for i in range(4): kload(i)
    perms(SD, WT); mfmas(WT, XO, True)
    a("s_waitcnt vmcnt(4)")
    stamp(3)
    for i in range(4, 8): kload(i)
    perms(SD+16, WT); mfmas(WT, XO+4, False)
    a(f"s_lshl_b32 {t0}, {sW}, 10")
    a(f"v_add_u32 {vA}, {t0}, {vV}")
    densify(TM)
    a(f"s_cmp_eq_u32 {sW}, 8")
    a("s_cbranch_scc1 L_pub_strip")
    a(f"ds_write_b128 {vA}, {vr(TM,4)} offset:{L_R2}")
    a("s_waitcnt lgkmcnt(0)")
    a("s_barrier")

    a("L_attn:")
    a(f"v_bfe_u32 {vA}, {vL}, 3, 1")
    a(f"v_lshrrev_b32 {vB}, 4, {vL}")
    a(f"v_lshl_add_u32 {vA}, {vA}, 2, {vB}")
    a(f"v_and_b32 {vB}, 3, {vL}")
    a(f"v_lshl_add_u32 {vA}, {vA}, 2, {vB}")
    a(f"v_lshlrev_b32 {vA}, 7, {vA}")
    a(f"s_mov_b32 {sCnt}, {spin}")
    a("s_waitcnt vmcnt(4)")
    stamp(4)
    a(f"buffer_load_dwordx4 {vr(TM,4)}, {vA}, s[20:23], {sQ} offen sc1")
    a(f"buffer_load_dwordx4 {vr(TM+4,4)}, {vA}, s[20:23], {sQ} offen offset:16 sc1")
    for i in range(4): vload(i)
    a("s_waitcnt vmcnt(4)")
    stamp(5)
    for i in range(4, 8): vload(i)
    a("L_qchk:")
    tagcheck(TM, 8, vB)
    a("s_cbranch_vccz L_qok")
    a(f"buffer_load_dwordx4 {vr(TM,4)}, {vA}, s[20:23], {sQ} offen sc1")
    a(f"buffer_load_dwordx4 {vr(TM+4,4)}, {vA}, s[20:23], {sQ} offen offset:16 sc1")
    a(f"s_sub_u32 {sCnt}, {sCnt}, 1")
    a("s_waitcnt vmcnt(0)")
    a("s_cbranch_scc0 L_qchk")
    a("L_qok:")
    stamp(6)
    for t in range(4): a(f"v_perm_b32 {v(XO+t)}, {v(TM+2*t+1)}, {v(TM+2*t)}, {sSelHi}")
    for i in range(8):
        a(f"v_mfma_f32_16x16x32_bf16 {vr(ACC+4*i,4)}, {vr(KD+4*i,4)}, {vr(XO,4)}, 0")
    SC = TM
    for i in range(8):
        a(f"v_mov_b32_dpp {v(SC+i)}, {v(ACC+4*i)} quad_perm:[0,0,0,0] row_mask:0xf bank_mask:0xf")
        for q in (1, 2, 3):
            a(f"v_add_f32_dpp {v(SC+i)}, {v(ACC+4*i+q)}, {v(SC+i)} quad_perm:[{q},{q},{q},{q}] row_mask:0xf bank_mask:0xf")
    for i in range(8): rnd(v(SC+i), v(SC+i))
    for i in range(8): a(f"v_mul_f32 {v(SC+i)}, {hx(SCALE)}, {v(SC+i)}")
    for i in range(8): rnd(v(SC+i), v(SC+i))
    a(f"v_max3_f32 {vA}, {v(SC)}, {v(SC+1)}, {v(SC+2)}")
    a(f"v_max3_f32 {vB}, {v(SC+3)}, {v(SC+4)}, {v(SC+5)}")
    a(f"v_max3_f32 {vA}, {vA}, {v(SC+6)}, {v(SC+7)}")
    a(f"v_max_f32 {vA}, {vA}, {vB}")
    a(f"v_mov_b32 {vB}, {vA}")
    a(f"s_mov_b32 {t0}, {hx(LOG2E)}")
    a(f"v_permlane32_swap_b32 {vA}, {vB}")
    a(f"v_max_f32 {vA}, {vA}, {vB}")
    a(f"v_mov_b32 {vB}, {vA}")
    a(f"v_permlane16_swap_b32 {vA}, {vB}")
    a(f"v_max_f32 {vA}, {vA}, {vB}")
    for i in range(8): a(f"v_sub_f32 {v(SC+i)}, {v(SC+i)}, {vA}")
    for i in range(8): a(f"v_mul_f32 {v(SC+i)}, {t0}, {v(SC+i)}")
    for i in range(8): a(f"v_exp_f32 {v(SC+i)}, {v(SC+i)}")
    Y = TM + 8
    a(f"v_bfe_u32 {v(Y+2)}, {vL}, 3, 1")
    a(f"v_add_f32 {vB}, {v(SC)}, {v(SC+1)}")
    a(f"v_add_f32 {v(Y)}, {v(SC+2)}, {v(SC+3)}")
    a(f"v_add_f32 {vB}, {vB}, {v(SC+4)}")
    a(f"v_add_f32 {v(Y)}, {v(Y)}, {v(SC+5)}")
    a(f"v_add_f32 {vB}, {vB}, {v(SC+6)}")
    a(f"v_add_f32 {v(Y)}, {v(Y)}, {v(SC+7)}")
    a(f"v_add_f32 {vB}, {vB}, {v(Y)}")
    a(f"v_mov_b32 {v(Y)}, {vB}")
    a(f"s_lshl_b32 {t0}, {sW}, 2")
    a(f"v_lshl_add_u32 {v(Y+2)}, {v(Y+2)}, 5, {t0}")
    a(f"v_permlane32_swap_b32 {vB}, {v(Y)}")
    a(f"v_add_f32 {vB}, {vB}, {v(Y)}")
    a(f"v_mov_b32 {v(Y)}, {vB}")
    a(f"v_permlane16_swap_b32 {vB}, {v(Y)}")
    a(f"v_add_f32 {vB}, {vB}, {v(Y)}")
    a(f"ds_write2_b32 {v(Y+2)}, {vA}, {vB} offset0:{L_M//4} offset1:{L_L//4}")
    for i in range(8):
        a(f"v_cvt_pk_bf16_f32 {v(SC+i)}, {v(SC+i)}, {v(SC+i)}")
    a("s_waitcnt lgkmcnt(0)")
    a("s_barrier")
    for i in range(8):
        for t in range(4): a(f"v_and_b32 {v(KD+4*i+t)}, {v(SC+i)}, {vPM[t]}")
    stamp(7)
    a("s_waitcnt vmcnt(4)")
    a(f"buffer_load_dwordx4 {vr(TM,4)}, {vAux}, s[20:23], {sAux0} offen sc1")
    a(f"buffer_load_dwordx4 {vr(TM+4,4)}, {vAux}, s[20:23], {sAux1} offen sc1")
    for i in range(4): tload(i, sT)
    a(f"s_lshl_b32 {t0}, {sW}, 10")
    a(f"v_add_u32 {vA}, {t0}, {vV}")
    for i in range(8):
        if i >= 4: a(f"s_waitcnt vmcnt({6 + 7 - i})")
        a(f"v_mfma_f32_16x16x32_bf16 {vr(ACC,4)}, {vr(KD+4*i,4)}, {vr(VD+4*i,4)}, {'0' if i==0 else vr(ACC,4)}")
    stamp(8)
    a(f"ds_write_b128 {vA}, {vr(ACC,4)} offset:{L_R4}")
    a("s_waitcnt lgkmcnt(0)")
    a("s_barrier")
    a(f"s_cmp_eq_u32 {sType}, 3")
    a("s_cbranch_scc1 L_reduce")
    a("s_waitcnt vmcnt(4)")

    a("L_term:")
    a(f"s_mov_b32 {sCnt}, {spin}")
    a("L_auxchk:")
    tagcheck(TM, 8, vB)
    a("s_cbranch_vccz L_auxok")
    a(f"buffer_load_dwordx4 {vr(TM,4)}, {vAux}, s[20:23], {sAux0} offen sc1")
    a(f"buffer_load_dwordx4 {vr(TM+4,4)}, {vAux}, s[20:23], {sAux1} offen sc1")
    a(f"s_sub_u32 {sCnt}, {sCnt}, 1")
    a("s_waitcnt vmcnt(0)")
    a("s_cbranch_scc0 L_auxchk")
    a("L_auxok:")
    stamp(9)
    a(f"s_cmp_eq_u32 {sType}, 1")
    a("s_cbranch_scc1 L_term_wo")
    c0 = -2 * math.sqrt(2 / math.pi) * LOG2E; c1 = c0 * 0.044715
    a(f"s_mov_b32 {t0}, {hx(c1)}")
    a(f"v_mov_b32 {vA}, {hx(c0)}")
    for i in range(8): a(f"v_and_b32 {v(TM+i)}, 0xffff0000, {v(TM+i)}")
    for i in range(4): a(f"v_mul_f32 {v(Y+i)}, {v(TM+i)}, {v(TM+i)}")
    for i in range(4): a(f"v_fma_f32 {v(Y+i)}, {v(Y+i)}, {t0}, {vA}")
    for i in range(4): a(f"v_mul_f32 {v(Y+i)}, {v(Y+i)}, {v(TM+i)}")
    for i in range(4): a(f"v_exp_f32 {v(Y+i)}, {v(Y+i)}")
    for i in range(4): a(f"v_add_f32 {v(Y+i)}, 1.0, {v(Y+i)}")
    for i in range(4): a(f"v_rcp_f32 {v(Y+i)}, {v(Y+i)}")
    for i in range(4): a(f"v_mul_f32 {v(Y+i)}, {v(Y+i)}, {v(TM+i)}")
    for i in range(4): rnd(v(Y+i), v(Y+i))
    for i in range(4): a(f"v_mul_f32 {v(Y+i)}, {v(Y+i)}, {v(TM+4+i)}")
    a(f"v_cvt_pk_bf16_f32 {v(TM)}, {v(Y)}, {v(Y+1)}")
    a(f"v_cvt_pk_bf16_f32 {v(TM+1)}, {v(Y+2)}, {v(Y+3)}")
    xoperands(v(TM), v(TM+1), (0, 1))
    for i in range(16): a(f"v_mov_b32 {v(ACC+i)}, 0")
    a(f"s_cmp_eq_u32 {sType}, 0")
    a("s_cbranch_scc1 L_term_u0")
    perms(SD+16, WT); mfmas(WT, XO+4, False)
    a("L_term_u0:")
    a("s_waitcnt vmcnt(0)")
    perms(SD, WT)
    a("s_branch L_term_fin")
    a("L_term_wo:")
    OG = KD
    a(f"buffer_load_dwordx4 {vr(OG,4)}, {vOG}, s[20:23], {sOG} offen sc1")
    a(f"buffer_load_dwordx4 {vr(OG+4,4)}, {vOG}, s[20:23], {sOG} offen offset:1024 sc1")
    for i in (0, 1, 4, 5): a(f"v_and_b32 {v(TM+i)}, {sM}, {v(TM+i)}")
    a(f"v_max_f32 {vA}, {v(TM)}, {v(TM+4)}")
    a(f"s_mov_b32 {t0}, {hx(LOG2E)}")
    a(f"v_max_f32_dpp {vA}, {vA}, {vA} quad_perm:[1,0,3,2] row_mask:0xf bank_mask:0xf")
    a(f"v_sub_f32 {v(TM)}, {v(TM)}, {vA}")
    a(f"v_sub_f32 {v(TM+4)}, {v(TM+4)}, {vA}")
    a(f"v_mul_f32 {v(TM)}, {t0}, {v(TM)}")
    a(f"v_mul_f32 {v(TM+4)}, {t0}, {v(TM+4)}")
    a(f"v_exp_f32 {v(TM)}, {v(TM)}")
    a(f"v_exp_f32 {v(TM+4)}, {v(TM+4)}")
    a(f"v_mul_f32 {vA}, {v(TM)}, {v(TM+1)}")
    a(f"v_fmac_f32 {vA}, {v(TM+4)}, {v(TM+5)}")
    a(f"v_add_f32_dpp {vA}, {vA}, {vA} quad_perm:[1,0,3,2] row_mask:0xf bank_mask:0xf")
    a(f"v_rcp_f32 {vA}, {vA}")
    for i in range(16): a(f"v_mov_b32 {v(ACC+i)}, 0")
    a(f"v_mul_f32 {v(TM)}, {v(TM)}, {vA}")
    a(f"v_mul_f32 {v(TM+4)}, {v(TM+4)}, {vA}")
    a("s_waitcnt vmcnt(2)")
    perms(SD, WT)
    stamp(10)
    a(f"s_mov_b32 {sCnt}, {spin}")
    a("s_waitcnt vmcnt(0)")
    a("L_ochk:")
    tagcheck(OG, 8, vB)
    a("s_cbranch_vccz L_ook")
    a(f"buffer_load_dwordx4 {vr(OG,4)}, {vOG}, s[20:23], {sOG} offen sc1")
    a(f"buffer_load_dwordx4 {vr(OG+4,4)}, {vOG}, s[20:23], {sOG} offen offset:1024 sc1")
    a(f"s_sub_u32 {sCnt}, {sCnt}, 1")
    a("s_waitcnt vmcnt(0)")
    a("s_cbranch_scc0 L_ochk")
    a("L_ook:")
    for i in range(8): a(f"v_and_b32 {v(OG+i)}, {sM}, {v(OG+i)}")
    for i in range(4): a(f"v_mul_f32 {v(OG+i)}, {v(OG+i)}, {v(TM)}")
    for i in range(4): a(f"v_fmac_f32 {v(OG+i)}, {v(OG+4+i)}, {v(TM+4)}")
    for i in range(4): a(f"v_add_f32_dpp {v(OG+i)}, {v(OG+i)}, {v(OG+i)} quad_perm:[1,0,3,2] row_mask:0xf bank_mask:0xf")
    a(f"v_cvt_pk_bf16_f32 {v(TM)}, {v(OG)}, {v(OG+1)}")
    a(f"v_cvt_pk_bf16_f32 {v(TM+1)}, {v(OG+2)}, {v(OG+3)}")
    for k, (src, mk) in enumerate(((TM, vM0), (TM+1, vM0), (TM, vM1), (TM+1, vM1))):
        a(f"v_and_b32 {v(XO+k)}, {v(src)}, {mk}")
    a("L_term_fin:")
    stamp(11)
    mfmas(WT, XO, False)
    a(f"s_lshl_b32 {t0}, {sW}, 10")
    a(f"v_add_u32 {vA}, {t0}, {vV}")
    densify(TM)
    a(f"s_cmp_eq_u32 {sW}, 8")
    a("s_cbranch_scc1 L_pub_fin")
    a(f"ds_write_b128 {vA}, {vr(TM,4)} offset:{L_R5}")
    a("s_waitcnt lgkmcnt(0)")
    a("s_barrier")
    a("s_branch L_done")

    def lds_sum(off, fma=None):
        for w in range(8): a(f"ds_read_b128 {vr(KD+4*w,4)}, {vV} offset:{off+1024*w}")
        for w in range(8):
            a(f"s_waitcnt lgkmcnt({7-w})")
            if fma is None:
                a(f"v_pk_add_f32 {vr(TM,2)}, {vr(TM,2)}, {vr(KD+4*w,2)}")
                a(f"v_pk_add_f32 {vr(TM+2,2)}, {vr(TM+2,2)}, {vr(KD+4*w+2,2)}")
            else:
                for k in range(4):
                    if w == 0: a(f"v_mul_f32 {v(fma+8+k)}, {v(KD+4*w+k)}, {v(fma+w)}")
                    else: a(f"v_fmac_f32 {v(fma+8+k)}, {v(KD+4*w+k)}, {v(fma+w)}")
    a("L_pub_strip:")
    a("s_waitcnt vmcnt(0)")
    a("s_barrier")
    lds_sum(L_R2)
    for k in range(4): rnd(v(TM+k), v(TM+k))
    addtags(TM)
    a(f"buffer_store_dwordx4 {vr(TM,4)}, {vV}, s[20:23], {sPubS} offen sc1")
    stamp(4)
    a("L_pub_mid:")
    F = VD
    a("s_waitcnt vmcnt(0)")
    a(f"v_lshrrev_b32 {vA}, 5, {vL}")
    a(f"v_lshlrev_b32 {vB}, 5, {vA}")
    a("s_barrier")
    a(f"ds_read_b128 {vr(F,4)}, {vB} offset:{L_M}")
    a(f"ds_read_b128 {vr(F+4,4)}, {vB} offset:{L_M+16}")
    a(f"ds_read_b128 {vr(F+16,4)}, {vB} offset:{L_L}")
    a(f"ds_read_b128 {vr(F+20,4)}, {vB} offset:{L_L+16}")
    a(f"s_mov_b32 {t0}, {hx(LOG2E)}")
    a(f"s_lshl_b32 {t1}, {sU}, 7")
    a(f"s_add_u32 {t1}, {t1}, {STB}")
    a(f"v_lshlrev_b32 {vB}, 4, {vA}")
    a("s_waitcnt lgkmcnt(0)")
    Z = F + 12
    a(f"v_max3_f32 {v(Z)}, {v(F)}, {v(F+1)}, {v(F+2)}")
    a(f"v_max3_f32 {v(Z)}, {v(Z)}, {v(F+3)}, {v(F+4)}")
    a(f"v_max3_f32 {v(Z)}, {v(Z)}, {v(F+5)}, {v(F+6)}")
    a(f"v_max_f32 {v(Z)}, {v(Z)}, {v(F+7)}")
    for w in range(8): a(f"v_sub_f32 {v(F+w)}, {v(F+w)}, {v(Z)}")
    for w in range(8): a(f"v_mul_f32 {v(F+w)}, {t0}, {v(F+w)}")
    for w in range(8): a(f"v_exp_f32 {v(F+w)}, {v(F+w)}")
    a(f"v_mul_f32 {v(Z+1)}, {v(F)}, {v(F+16)}")
    for w in range(1, 8): a(f"v_fmac_f32 {v(Z+1)}, {v(F+w)}, {v(F+16+w)}")
    addtags(Z)
    a("s_mov_b32 exec_lo, 1")
    a("s_mov_b32 exec_hi, 1")
    a(f"buffer_store_dwordx4 {vr(Z,4)}, {vB}, s[20:23], {t1} offen sc1")
    a("s_mov_b64 exec, -1")
    stamp(7)
    a(f"s_bitcmp1_b32 {sType}, 0")
    a("s_cbranch_scc1 L_pub_noT")
    a(f"buffer_load_dwordx4 {vr(TM,4)}, {vAux}, s[20:23], {sAux0} offen sc1")
    a(f"buffer_load_dwordx4 {vr(TM+4,4)}, {vAux}, s[20:23], {sAux1} offen sc1")
    for i in range(4): tload(i, sT)
    a("L_pub_noT:")
    a(f"v_and_b32 {vB}, 15, {vL}")
    a(f"v_lshl_add_u32 {vA}, {vA}, 4, {vB}")
    a(f"v_bfe_u32 {vB}, {vL}, 4, 1")
    a(f"v_lshl_add_u32 {vA}, {vA}, 1, {vB}")
    a(f"v_lshlrev_b32 {vA}, 4, {vA}")
    a(f"s_lshl_b32 {t1}, {sU}, 10")
    a(f"s_add_u32 {t1}, {t1}, {OB}")
    a("s_barrier")
    lds_sum(L_R4, fma=F)
    addtags(F+8)
    a(f"buffer_store_dwordx4 {vr(F+8,4)}, {vA}, s[20:23], {t1} offen sc1")
    stamp(8)
    a(f"s_cmp_eq_u32 {sType}, 3")
    a("s_cbranch_scc1 L_reduce")
    a(f"s_cmp_lg_u32 {sType}, 1")
    a("s_waitcnt vmcnt(1)")
    a("s_cbranch_scc1 L_term")
    for k in range(4): a(f"v_mov_b32 {v(TM+k)}, 0")
    a("L_pub_fin:")
    a("s_barrier")
    lds_sum(L_R5)
    addtags(TM)
    a(f"buffer_store_dwordx4 {vr(TM,4)}, {vV}, s[20:23], {sPubP} offen sc1")
    stamp(12)
    a("s_branch L_done")

    a("L_reduce:")
    R = SD
    a("s_waitcnt vmcnt(0)")
    a(f"v_lshrrev_b32 {vA}, 3, {vL}")
    a(f"v_lshlrev_b32 {vA}, 10, {vA}")
    a(f"v_and_b32 {vB}, 7, {vL}")
    a(f"v_lshl_add_u32 {vA}, {vB}, 4, {vA}")
    a(f"s_lshl_b32 {t0}, {sW}, 15")
    a(f"s_lshl_b32 {t1}, {sX}, 7")
    a(f"s_add_u32 {t0}, {t0}, {t1}")
    a(f"s_add_u32 {t0}, {t0}, {PB}")
    a(f"s_add_u32 {t1}, {t0}, 8192")
    a(f"s_add_u32 {t2}, {t0}, 16384")
    a(f"s_add_u32 {t3}, {t0}, 24576")
    a(f"s_cmp_lt_u32 {sW}, 5")
    a(f"s_cselect_b32 {t3}, {t2}, {t3}")
    a(f"s_cselect_b32 {sAux0}, 0, {sM}")
    a(f"v_bfe_u32 {vB}, {vL}, 1, 2")
    a(f"v_mul_u32_u24 {vB}, 1152, {vB}")
    a(f"v_and_b32 {vK}, 1, {vL}")
    a(f"v_lshl_add_u32 {vB}, {vK}, 3, {vB}")
    a(f"v_lshrrev_b32 {vK}, 4, {vL}")
    a(f"v_lshl_add_u32 {vK}, {vK}, 1, {vB}")
    a(f"s_lshl_b32 {sAux1}, {sW}, 3")
    a(f"s_add_u32 {sAux1}, {sAux1}, {sX}")
    a(f"s_lshl_b32 {sAux1}, {sAux1}, 4")
    a(f"buffer_load_ushort {vT}, {vK}, s[24:27], {sAux1} offen")
    a(f"s_mov_b32 {sCnt}, {spin}")
    a("L_rpoll:")
    for t, so in enumerate((t0, t1, t2, t3)):
        a(f"buffer_load_dwordx4 {vr(R+4*t,4)}, {vA}, s[20:23], {so} offen sc1")
    a(f"s_sub_u32 {sCnt}, {sCnt}, 1")
    a("s_cbranch_scc1 L_rok")
    a("s_waitcnt vmcnt(0)")
    tagcheck(R, 16, vB)
    a("s_cbranch_vccnz L_rpoll")
    a("L_rok:")
    a("s_waitcnt vmcnt(0)")
    stamp(11)
    for i in range(16): a(f"v_and_b32 {v(R+i)}, {sM if i<12 else sAux0}, {v(R+i)}")
    for i in (0, 2, 8, 10): a(f"v_pk_add_f32 {vr(R+i,2)}, {vr(R+i,2)}, {vr(R+i+4,2)}")
    for i in (0, 1, 8, 9): a(f"v_permlane32_swap_b32 {v(R+i)}, {v(R+i+2)}")
    for i in (0, 8): a(f"v_pk_add_f32 {vr(R+i,2)}, {vr(R+i,2)}, {vr(R+i+2,2)}")
    for i in (0, 8): a(f"v_permlane16_swap_b32 {v(R+i)}, {v(R+i+1)}")
    for i in (8, 0): a(f"v_add_f32 {v(R+i)}, {v(R+i)}, {v(R+i+1)}")
    for i in (8, 0): a(f"v_add_f32_dpp {v(R+i)}, {v(R+i)}, {v(R+i)} row_ror:8 row_mask:0xf bank_mask:0xf")
    rnd(v(R+8), v(R+8)); rnd(v(R), v(R))
    a(f"v_mul_f32 {vA}, {hx(-LOG2E)}, {v(R+8)}")
    a(f"v_exp_f32 {vA}, {vA}")
    a(f"v_lshlrev_b32 {vT}, 16, {vT}")
    a(f"v_add_f32 {vA}, 1.0, {vA}")
    a(f"v_rcp_f32 {vA}, {vA}")
    a(f"v_mul_f32 {vA}, {vA}, {v(R+8)}")
    rnd(vA, vA)
    a(f"v_mul_f32 {vA}, {vA}, {v(R)}")
    rnd(vA, vA)
    a(f"v_add_f32 {vA}, {vA}, {vT}")
    a(f"v_cvt_pk_bf16_f32 {vA}, {vA}, {vA}")
    a("s_mov_b32 exec_lo, 0x00ff00ff")
    a("s_mov_b32 exec_hi, 0x00ff00ff")
    a(f"buffer_store_short {vA}, {vK}, s[28:31], {sAux1} offen")
    stamp(12)
    a(f"s_cmp_lg_u32 {sAux1}, 0")
    a("s_cbranch_scc1 L_done")
    a("s_mov_b64 exec, 1")
    a(f"v_mov_b32 {vA}, {sTag}")
    a(f"v_mov_b32 {vB}, 0")
    a(f"buffer_store_dword {vA}, {vB}, s[20:23], 0 offen sc1")
    a("L_done:")
    if stamps:
        a("s_mov_b64 exec, -1")
        a("s_waitcnt vmcnt(0)")
        stamp(13)
        a("s_waitcnt lgkmcnt(0)")
        a(f"s_mul_i32 {t0}, s2, 9")
        a(f"s_add_u32 {t0}, {t0}, {sW}")
        a(f"s_lshl_b32 {t0}, {t0}, 6")
        a(f"s_add_u32 {t0}, {t0}, {STAMP}")
        a(f"v_mov_b32 {vA}, 0")
        for i in range(nst[0]): a(f"v_writelane_b32 {vA}, s{60+2*i}, {i}")
        a(f"v_lshlrev_b32 {vB}, 2, {vL}")
        a("s_mov_b64 exec, 0xffff")
        a(f"buffer_store_dword {vA}, {vB}, s[20:23], {t0} offen")
    a("L_end:")
    a("s_endpgm")
    body, n = hazard.fix(a.text(), verbose=False)
    txt = HEADER + f"; @launch grid=(256,1,1) block=(576,1,1) lds={L_END}\n" + file_begin() + kernel_begin(name) + body + kernel_desc(name, 168, sgpr=96, extra="  .amdhsa_float_denorm_mode_32 3\n")
    open(fname, "w").write(txt)
    print(fname, "nops inserted", n)

if __name__ == "__main__":
    gen("v1.s")
    gen("v1_st.s", stamps=True)
    gen("v1_def.s", policy="")
    gen("v1_nopf.s", prefetch=False)
```

```python
import sys, math, struct
from common import *
import hazard

def f2u(x): return struct.unpack("<I", struct.pack("<f", x))[0]
def hx(x): return f"0x{f2u(x):08x}"

SB  = 0x10000
STB = 0x50000
OB  = 0x60000
PB  = 0xA0000
WS_USED = 0x100000
STAMP = 128 << 20
BST = 53248
L_LN = 0; L_M = 384; L_L = 448; L_Q = 512; L_R2 = 1024; L_R4 = L_R2 + 8192; L_R5 = L_R4 + 8192; L_END = L_R5 + 8192

LOG2E = 1.4426950408889634
SCALE = 128 ** -0.5

def gen(fname, policy="nt", stamps=False, prefetch=True, spin=20000, W=5, dbgspan=False):
    a = Asm()
    name = KNAME + "_kernel"
    P = policy
    sTag = "s32"; sX = "s33"; sJ = "s34"; sW = "s3"
    T = ["s32", "s37", "s38", "s39"]
    sSelLo = "s40"; sSelHi = "s41"
    sKV = "s42"
    sS = "s43"
    sStr = "s44"
    sT = "s45"
    sAux0 = "s46"; sAux1 = "s47"
    sQ = "s48"
    sPubS = "s49"
    sPubP = "s50"
    sOG = "s51"
    sType = "s52"
    sU = "s53"
    sCnt = "s54"
    sM = "s55"
    t0, t1, t2, t3 = "s56", "s57", "s58", "s59"
    nst = [0]
    def stamp(i):
        if stamps:
            a(f"s_memrealtime s[{60+2*i}:{61+2*i}]")
            nst[0] = max(nst[0], i + 1)
    vL = "v0"; vS = "v1"; vT = "v2"; vK = "v3"; vV = "v4"; vM0 = "v5"; vM1 = "v6"
    vAux = "v7"; vOG = "v8"; vPM = [f"v{9+i}" for i in range(4)]; vFF = "v13"; vA = "v14"; vB = "v15"
    SD = 16; KD = 48; VD = 80; ACC = 112; WT = 128; XO = 144; TM = 152
    def v(i): return f"v{i}"
    def vr(i, n): return f"v[{i}:{i+n-1}]"

    if stamps:
        for i in range(60, 92, 2): a(f"s_mov_b64 s[{i}:{i+1}], 0")
    stamp(0)
    a("s_cmp_ge_u32 s2, 256")
    a("s_cbranch_scc1 L_end")
    a(f"s_and_b32 {sX}, s2, 7")
    a(f"s_lshr_b32 {sJ}, s2, 3")
    a(f"s_cmp_lt_u32 {sJ}, 17")
    a(f"s_cselect_b32 {t0}, 48, 56")
    a(f"s_cselect_b32 {t2}, 8, 17")
    a(f"s_cmp_lt_u32 {sJ}, 8")
    a(f"s_cselect_b32 {t0}, 24, {t0}")
    a(f"s_load_dwordx2 s[4:5], s[0:1], {t0}")
    a("s_load_dwordx2 s[24:25], s[0:1], 0")
    a("s_load_dwordx2 s[8:9], s[0:1], 8")
    a("s_load_dwordx2 s[20:21], s[0:1], 88")
    a(f"s_sub_u32 {t1}, {sJ}, 8")
    a(f"s_cmp_lt_u32 {t1}, 18")
    a(f"s_cselect_b32 {t1}, 32, 64")
    a(f"s_cselect_b32 s18, 8, 9")
    a(f"s_mul_i32 s18, s18, 589824")
    a(f"s_load_dwordx2 s[16:17], s[0:1], {t1}")
    a("s_load_dwordx2 s[12:13], s[0:1], 16")
    a("s_load_dwordx2 s[28:29], s[0:1], 72")
    a("v_lshrrev_b32 v1, 6, v0")
    a("v_and_b32 v0, 63, v0")
    a("v_readfirstlane_b32 s3, v1")
    a(f"s_cmp_lg_u32 {sW}, 8")
    a("s_cbranch_scc1 L_noprio")
    a("s_setprio 3")
    a("L_noprio:")
    a(f"s_cmp_lt_u32 {sJ}, 8")
    a(f"s_cselect_b32 {t0}, 8, 9")
    a(f"s_cselect_b32 {t2}, 0, {t2}")
    a(f"s_lshl_b32 {sStr}, {t0}, 10")
    a(f"s_mul_i32 s6, {t0}, 589824")
    a(f"s_mul_i32 {t0}, {t0}, {sX}")
    a(f"s_add_u32 {t0}, {t0}, {sJ}")
    a(f"s_sub_u32 {t0}, {t0}, {t2}")
    a(f"s_lshl_b32 {t3}, {t2}, 3")
    a(f"s_add_u32 {t3}, {t3}, {t0}")
    a(f"s_lshl_b32 {sPubS}, {t3}, 8")
    a(f"s_add_u32 {sPubS}, {sPubS}, {SB}")
    a(f"s_lshl_b32 {t0}, {t0}, 7")
    a(f"s_lshl_b32 {t1}, {sW}, 5")
    a(f"s_mul_i32 {sS}, {t1}, {sStr}")
    a(f"s_add_u32 {sS}, {sS}, {t0}")
    for r in (7, 11, 15, 19, 23, 27, 31): a(f"s_mov_b32 s{r}, 0x20000")
    a(f"s_mov_b32 s26, {SZ['x']}")
    a(f"v_lshrrev_b32 {vA}, 4, {vL}")
    a(f"v_bfe_u32 {vB}, {vL}, 1, 1")
    a(f"v_lshl_add_u32 {vB}, {vB}, 2, {vA}")
    a(f"v_bfe_u32 v16, {vL}, 2, 2")
    a(f"v_and_b32 v17, 1, {vL}")
    a(f"v_lshl_add_u32 v16, v16, 1, v17")
    a(f"v_lshlrev_b32 v16, 4, v16")
    a(f"s_lshl_b32 {t0}, {sStr}, 2")
    a(f"v_mad_u32_u24 {vS}, {vB}, {t0}, v16")
    a(f"v_mul_u32_u24 {vT}, {4*1152}, {vB}")
    a(f"v_add_u32 {vT}, {vT}, v16")
    a(f"v_bfe_u32 v18, {vL}, 3, 1")
    a(f"v_lshl_add_u32 v18, v18, 2, {vA}")
    a(f"v_bfe_u32 v19, {vL}, 1, 2")
    a(f"v_mul_u32_u24 v20, 1152, v19")
    a(f"v_mul_u32_u24 v21, 576, v17")
    a(f"v_lshlrev_b32 v22, 3, v18")
    a(f"v_add3_u32 v20, v20, v21, v22")
    a(f"s_lshl_b32 {t1}, {sW}, 6")
    a(f"s_cmp_ge_u32 {sJ}, 26")
    a("s_waitcnt lgkmcnt(0)")
    a(f"s_load_dword {sTag}, s[20:21], 0")
    a("s_cbranch_scc1 L_nostrip_issue")
    a(f"buffer_load_dwordx2 {vr(TM,2)}, v20, s[24:27], {t1} offen")
    a(f"v_mov_b32 {v(TM+2)}, v17")
    a(f"v_mov_b32 {v(TM+3)}, v18")
    a(f"v_mov_b32 {v(TM+4)}, v19")
    def sload(i):
        a(f"buffer_load_dwordx4 {vr(SD+4*i,4)}, {vS}, s[4:7], {sS} offen {P}")
        if i == 3:
            a(f"s_mul_i32 s35, {sStr}, 285")
            a(f"s_add_u32 {sS}, {sS}, s35")
        elif i < 7:
            a(f"s_add_u32 {sS}, {sS}, {sStr}")
    for i in range(W-1): sload(i)
    a("s_branch L_setup2")
    a("L_nostrip_issue:")
    a(f"v_mov_b32 {v(TM+2)}, v17")
    a(f"v_mov_b32 {v(TM+3)}, v18")
    a(f"v_mov_b32 {v(TM+4)}, v19")
    a("L_setup2:")
    vSel = v(TM+2); vKG = v(TM+3); vBb = v(TM+4)
    a(f"s_mov_b32 s22, {SZ['ws']}")
    a(f"s_mov_b32 s30, {SZ['out']}")
    a(f"s_mov_b32 s10, {SZ['k']}")
    a(f"s_mov_b32 s14, {SZ['v']}")
    a(f"s_mov_b32 {sSelLo}, 0x05040100")
    a(f"s_mov_b32 {sSelHi}, 0x07060302")
    a(f"s_mov_b32 {sM}, 0xffffff00")
    a(f"s_lshl_b32 {sU}, {sX}, 5")
    a(f"s_add_u32 {sU}, {sU}, {sJ}")
    a(f"s_lshr_b32 {t0}, {sU}, 4")
    a(f"s_bfe_u32 {t1}, {sJ}, 0x20002")
    a(f"s_lshl_b32 {sQ}, {t0}, 10")
    a(f"s_mul_i32 {t2}, {t1}, {BST}")
    a(f"s_add_u32 {sQ}, {sQ}, {t2}")
    a(f"s_add_u32 {sQ}, {sQ}, {SB}")
    a(f"s_lshl_b32 {t1}, {t1}, 4")
    a(f"s_add_u32 {t0}, {t0}, {t1}")
    a(f"s_lshl_b32 {sKV}, {t0}, 20")
    a(f"s_and_b32 {t0}, {sJ}, 3")
    a(f"s_lshl_b32 {t0}, {t0}, 3")
    a(f"s_and_b32 {t1}, {sW}, 7")
    a(f"s_add_u32 {t0}, {t0}, {t1}")
    a(f"s_lshl_b32 {t0}, {t0}, 13")
    a(f"s_add_u32 {sKV}, {sKV}, {t0}")
    a(f"s_add_u32 {sKV}, {sKV}, {768*1024}")
    a(f"v_bfe_u32 {vK}, {vL}, 2, 2")
    a(f"v_bfe_u32 {vB}, {vL}, 1, 1")
    a(f"v_lshl_add_u32 {vK}, {vB}, 2, {vK}")
    a(f"v_lshlrev_b32 {vK}, 8, {vK}")
    a(f"v_lshl_add_u32 {vK}, {vA}, 5, {vK}")
    a(f"v_lshl_add_u32 {vK}, {vSel}, 4, {vK}")
    a(f"v_lshlrev_b32 {vV}, 4, {vL}")
    a(f"v_subrev_u32 {vM0}, 1, {vSel}")
    a(f"v_not_b32 {vM1}, {vM0}")
    a(f"v_mov_b32 {vFF}, 0xff")
    a(f"s_sub_u32 {t0}, {sJ}, 8")
    a(f"s_cmp_lt_u32 {t0}, 18")
    a("s_cbranch_scc1 L_type_wo")
    a(f"s_lshr_b32 {t0}, {sJ}, 1")
    a(f"s_add_u32 {t0}, {t0}, 5")
    a(f"s_sub_u32 {t1}, {sJ}, 26")
    a(f"s_and_b32 {t2}, {sJ}, 1")
    a(f"s_cmp_lt_u32 {sJ}, 8")
    a(f"s_cselect_b32 {t0}, {t0}, {t1}")
    a(f"s_cselect_b32 {t2}, {t2}, 0")
    a(f"s_cselect_b32 {sType}, 0, 2")
    a(f"s_cselect_b32 {t3}, 0, {72*16}")
    a(f"s_cmp_eq_u32 {sJ}, 31")
    a(f"s_cselect_b32 {sType}, 3, {sType}")
    a(f"s_cselect_b32 s18, 0, s18")
    a(f"v_mul_u32_u24 {vAux}, {BST}, {vBb}")
    a(f"v_lshl_add_u32 {vAux}, {vKG}, 4, {vAux}")
    a(f"v_mad_u32_u24 {vAux}, {vSel}, {t3}, {vAux}")
    a(f"v_mov_b32 {vOG}, 0")
    a(f"s_mov_b32 {sOG}, 0")
    a(f"s_lshl_b32 {t1}, {sX}, 1")
    a(f"s_add_u32 {t1}, {t1}, {t2}")
    a(f"s_mul_i32 {t3}, {t1}, 9")
    a(f"s_add_u32 {t3}, {t3}, {sW}")
    a(f"s_lshl_b32 {sAux0}, {t3}, 7")
    a(f"s_add_u32 {sAux0}, {sAux0}, {SB + 64*256}")
    a(f"s_add_u32 {sAux1}, {sAux0}, {72*256}")
    a(f"s_lshl_b32 {t2}, {t2}, 3")
    a(f"s_add_u32 {t2}, {t2}, {sX}")
    a(f"s_add_u32 {t2}, {t2}, 16")
    a("s_branch L_type_done")
    a("L_type_wo:")
    a(f"s_cmp_ge_u32 {t0}, 9")
    a(f"s_cselect_b32 {t1}, 9, 0")
    a(f"s_cselect_b32 {t2}, 1, 0")
    a(f"s_sub_u32 {t0}, {t0}, {t1}")
    a(f"s_lshl_b32 {t1}, {sX}, 1")
    a(f"s_add_u32 {t2}, {t2}, {t1}")
    a(f"s_mov_b32 {sType}, 1")
    a(f"v_lshl_add_u32 {vB}, {vBb}, 1, {vSel}")
    a(f"v_lshlrev_b32 {vAux}, 8, {vB}")
    a(f"v_lshlrev_b32 {vOG}, 11, {vB}")
    a(f"v_lshl_add_u32 {vOG}, {vKG}, 4, {vOG}")
    a(f"s_lshl_b32 {sAux0}, {t2}, 11")
    a(f"s_bfe_u32 {t1}, {sW}, 0x10002")
    a(f"s_lshl_b32 {t1}, {t1}, 4")
    a(f"s_add_u32 {sAux0}, {sAux0}, {t1}")
    a(f"s_add_u32 {sAux0}, {sAux0}, {STB}")
    a(f"s_add_u32 {sAux1}, {sAux0}, 128")
    a(f"s_lshl_b32 {sOG}, {t2}, 14")
    a(f"s_lshl_b32 {t1}, {sW}, 7")
    a(f"s_add_u32 {sOG}, {sOG}, {t1}")
    a(f"s_add_u32 {sOG}, {sOG}, {OB}")
    a(f"s_lshl_b32 {t3}, {t2}, 3")
    a(f"s_add_u32 {t3}, {t3}, {sW}")
    a("L_type_done:")
    a(f"s_mul_i32 {sT}, {t3}, {32*1152}")
    a(f"s_lshl_b32 {t1}, {t0}, 7")
    a(f"s_add_u32 {sT}, {sT}, {t1}")
    a(f"s_lshl_b32 {t0}, {t0}, 5")
    a(f"s_add_u32 {t0}, {t0}, {t2}")
    a(f"s_lshl_b32 {sPubP}, {t0}, 10")
    a(f"s_add_u32 {sPubP}, {sPubP}, {PB}")
    a(f"v_and_b32 {vB}, 1, {vL}")
    a(f"v_lshlrev_b32 {vB}, 4, {vB}")
    a(f"v_mov_b32 {v(TM+5)}, 0xffff")
    a(f"v_lshlrev_b32 {vB}, {vB}, {v(TM+5)}")
    for t in range(4):
        a(f"v_cmp_eq_u32 vcc, {t}, {vBb}")
        a(f"v_cndmask_b32 {vPM[t]}, 0, {vB}, vcc")
    a("s_waitcnt lgkmcnt(0)")
    a(f"s_mul_i32 {sTag}, {sTag}, 1664525")
    a(f"s_add_u32 {sTag}, {sTag}, 1013904223")
    for k in (1, 2, 3): a(f"s_lshr_b32 {T[k]}, {sTag}, {8*k}")

    def kload(i): a(f"buffer_load_dwordx4 {vr(KD+4*i,4)}, {vK}, s[8:11], {sKV if i<4 else t3} offen offset:{((i>>1)&1)*2048 + (i&1)*128} {P}")
    def vload(i): a(f"buffer_load_dwordx4 {vr(VD+4*i,4)}, {vV}, s[12:15], {sKV if i<4 else t3} offen offset:{(i&3)*1024} {P}")
    def tload(i, so): a(f"buffer_load_dwordx4 {vr(SD+4*i,4)}, {vT}, s[16:19], {so} offen offset:{(i&3)*1152} {P}")
    def perms(src, dst):
        for m in range(4):
            for hh in range(2):
                j = m + 4*hh
                for pr in range(2):
                    lo = src + 8*pr + (j >> 1); hi = lo + 4
                    a(f"v_perm_b32 {v(dst+4*m+2*hh+pr)}, {v(hi)}, {v(lo)}, {sSelHi if j&1 else sSelLo}")
    def mfmas(wsrc, xo, first):
        for m in range(4):
            c = "0" if first else vr(ACC+4*m, 4)
            a(f"v_mfma_f32_16x16x32_bf16 {vr(ACC+4*m,4)}, {vr(wsrc+4*m,4)}, {vr(xo,4)}, {c}")
    def densify(dst):
        for m in range(4):
            a(f"v_add_f32_dpp {v(dst+m)}, {v(ACC+4*m+2)}, {v(ACC+4*m)} row_ror:8 row_mask:0xf bank_mask:0x3")
        for m in range(4):
            a(f"v_add_f32_dpp {v(dst+m)}, {v(ACC+4*m+1)}, {v(ACC+4*m+3)} row_ror:8 row_mask:0xf bank_mask:0xc")
    def xoperands(p01, p23, units):
        for u in units:
            qp = "[0,0,2,2]" if u == 0 else "[1,1,3,3]"
            for k, (src, mk) in enumerate(((p01, vM0), (p23, vM0), (p01, vM1), (p23, vM1))):
                a(f"v_and_b32_dpp {v(XO+4*u+k)}, {src}, {mk} quad_perm:{qp} row_mask:0xf bank_mask:0xf")
    def tagcheck(base, n, acc):
        a(f"v_xor_b32 {acc}, {T[0]}, {v(base)}")
        for k in range(1, n):
            a(f"v_bitop3_b32 {acc}, {acc}, {v(base+k)}, {T[k&3]} bitop3:0xf6")
        a(f"v_and_b32 {acc}, 0xff, {acc}")
        a(f"v_cmp_ne_u32 vcc, 0, {acc}")
    def addtags(base):
        for k in range(4):
            a(f"v_bfi_b32 {v(base+k)}, {vFF}, {T[k]}, {v(base+k)}")
    def rnd(d, s): a(f"v_cvt_pk_bf16_f32 {d}, 0, {s}")

    a(f"s_add_u32 {t3}, {sKV}, 4096")
    a(f"s_cmp_ge_u32 {sJ}, 26")
    a("s_cbranch_scc0 L_ln")
    if prefetch:
        a(f"s_cmp_lg_u32 {sW}, 8")
        a("s_cbranch_scc1 L_nopf")
        a("s_getpc_b64 s[92:93]")
        a(f"v_lshlrev_b32 {vB}, 7, {vL}")
        a(f"v_min_u32 {vB}, (L_end - L_ln) & 0xfffffffc, {vB}")
        a(f"global_load_dword {vB}, {vB}, s[92:93]")
        a("L_nopf:")
    a(f"s_add_u32 {t0}, {sT}, {288*1152}")
    for i in range(4, 8): tload(i, t0)
    a(f"s_cmp_eq_u32 {sW}, 8")
    a("s_cbranch_scc1 L_pub_q")
    for i in range(W):
        if 4 + i >= W: a(f"s_waitcnt vmcnt({W-1})")
        kload(i)
    a("s_branch L_attn")

    a("L_ln:")
    a(f"s_waitcnt vmcnt({W-1})")
    stamp(1)
    sload(W-1)
    X = TM + 8
    a(f"v_lshlrev_b32 {v(X)}, 16, {v(TM)}")
    a(f"v_and_b32 {v(X+1)}, 0xffff0000, {v(TM)}")
    a(f"v_lshlrev_b32 {v(X+2)}, 16, {v(TM+1)}")
    a(f"v_and_b32 {v(X+3)}, 0xffff0000, {v(TM+1)}")
    a(f"v_add_f32 {vA}, {v(X)}, {v(X+1)}")
    a(f"v_mul_f32 {vB}, {v(X)}, {v(X)}")
    a(f"v_add_f32 {vA}, {vA}, {v(X+2)}")
    a(f"v_fmac_f32 {vB}, {v(X+1)}, {v(X+1)}")
    a(f"v_add_f32 {vA}, {vA}, {v(X+3)}")
    a(f"v_fmac_f32 {vB}, {v(X+2)}, {v(X+2)}")
    a(f"v_fmac_f32 {vB}, {v(X+3)}, {v(X+3)}")
    a(f"v_mul_u32_u24 {v(TM)}, 80, {vBb}")
    a(f"v_lshrrev_b32 {v(TM+1)}, 5, {vL}")
    a(f"v_permlane32_swap_b32 {vA}, {vB}")
    a(f"v_add_f32 {vA}, {vA}, {vB}")
    a(f"v_lshl_add_u32 {v(TM+1)}, {v(TM+1)}, 2, {v(TM)}")
    a(f"s_lshl_b32 {t0}, {sW}, 3")
    a(f"v_add_f32_dpp {vA}, {vA}, {vA} quad_perm:[1,0,3,2] row_mask:0xf bank_mask:0xf")
    a(f"v_add_u32 {v(TM+1)}, {t0}, {v(TM+1)}")
    a(f"v_add_f32_dpp {vA}, {vA}, {vA} row_ror:8 row_mask:0xf bank_mask:0xf")
    a(f"v_mov_b32 {vB}, {vA}")
    a(f"v_permlane16_swap_b32 {vA}, {vB}")
    a(f"v_add_f32 {vA}, {vA}, {vB}")
    a(f"ds_write_b32 {v(TM+1)}, {vA} offset:{L_LN}")
    a("s_waitcnt lgkmcnt(0)")
    a("s_barrier")
    for i in range(4): a(f"ds_read_b128 {vr(ACC+4*i,4)}, {v(TM)} offset:{L_LN+16*i}")
    a(f"ds_read_b64 {vr(ACC+16,2)}, {v(TM)} offset:{L_LN+64}")
    a("s_waitcnt lgkmcnt(0)")
    for i in range(1, 9): a(f"v_pk_add_f32 {vr(ACC,2)}, {vr(ACC,2)}, {vr(ACC+2*i,2)}")
    a(f"v_mul_f32 {vA}, {hx(1/576)}, {v(ACC)}")
    a(f"v_mul_f32 {vB}, {hx(1/576)}, {v(ACC+1)}")
    a(f"v_fma_f32 {vB}, -{vA}, {vA}, {vB}")
    a(f"v_max_f32 {vB}, 0, {vB}")
    rnd(vA, vA); rnd(vB, vB)
    a(f"v_add_f32 {vB}, {hx(1e-5)}, {vB}")
    rnd(vB, vB)
    a(f"v_sqrt_f32 {vB}, {vB}")
    for i in range(4): a(f"v_sub_f32 {v(X+i)}, {v(X+i)}, {vA}")
    rnd(vB, vB)
    a(f"v_rcp_f32 {vB}, {vB}")
    for i in range(4): rnd(v(X+i), v(X+i))
    for i in range(4): a(f"v_mul_f32 {v(X+i)}, {v(X+i)}, {vB}")
    a(f"v_cvt_pk_bf16_f32 {v(TM)}, {v(X)}, {v(X+1)}")
    a(f"v_cvt_pk_bf16_f32 {v(TM+1)}, {v(X+2)}, {v(X+3)}")
    xoperands(v(TM), v(TM+1), (0, 1))
    stamp(2)
    seq = [("S", i) for i in range(8)] + [("K", i) for i in range(8)] + [("V", i) for i in range(8)] + [("T", i) for i in range(4)] + [("A", 0), ("A", 1)]
    st = dict(n=W, landed=-1)
    def emit(k):
        t, i = seq[k]
        if t == "S": sload(i)
        elif t == "K": kload(i)
        elif t == "V": vload(i)
        elif t == "T": tload(i, sT)
        else: a(f"buffer_load_dwordx4 {vr(TM+4*i,4)}, {vAux}, s[20:23], {(sAux0, sAux1)[i]} offen sc1")
    def need(t, i):
        k = seq.index((t, i))
        assert k < st["n"]
        if k > st["landed"]:
            a(f"s_waitcnt vmcnt({st['n'] - 1 - k})")
            st["landed"] = k
    def fill():
        while st["n"] < len(seq) and (st["n"] - W <= st["landed"] or seq[st["n"]][0] == "A"):
            emit(st["n"]); st["n"] += 1
    def upto(t, i):
        k = seq.index((t, i))
        while st["landed"] < k:
            need(*seq[st["landed"] + 1]); fill()
    upto("S", 7 - W)
    a(f"s_cmp_eq_u32 {sW}, 8")
    a("s_cbranch_scc1 L_p1")
    upto("S", 3)
    a("s_branch L_u0")
    a("L_p1:")
    a("s_waitcnt vmcnt(0)")
    a("L_u0:")
    perms(SD, WT); mfmas(WT, XO, True)
    a("s_cbranch_scc1 L_u1")
    upto("S", 7)
    a("L_u1:")
    stamp(3)
    perms(SD+16, WT); mfmas(WT, XO+4, False)
    a(f"s_lshl_b32 {t0}, {sW}, 10")
    a(f"v_add_u32 {vA}, {t0}, {vV}")
    densify(TM)
    a(f"s_cmp_eq_u32 {sW}, 8")
    a("s_cbranch_scc1 L_pub_strip")
    a(f"ds_write_b128 {vA}, {vr(TM,4)} offset:{L_R2}")
    a("s_waitcnt lgkmcnt(0)")
    a("s_barrier")

    a("L_attn:")
    assert st["n"] == 8 + W
    a(f"v_bfe_u32 {vA}, {vL}, 3, 1")
    a(f"v_lshrrev_b32 {vB}, 4, {vL}")
    a(f"v_lshl_add_u32 {vB}, {vA}, 3, {vB}")
    a(f"v_and_b32 {v(TM)}, 1, {vL}")
    a(f"v_lshl_add_u32 {vB}, {vB}, 1, {v(TM)}")
    a(f"v_lshlrev_b32 {vB}, 4, {vB}")
    Y = TM + 8
    a(f"s_lshl_b32 {t0}, {sW}, 2")
    a(f"v_lshl_add_u32 {v(Y+2)}, {vA}, 5, {t0}")
    a(f"v_mov_b32 {v(Y+3)}, {hx(SCALE)}")
    a(f"s_mov_b32 {t0}, {hx(LOG2E)}")
    stamp(4)
    upto("K", 7)
    stamp(5)
    a("s_barrier")
    a(f"ds_read_b128 {vr(XO,4)}, {vB} offset:{L_Q}")
    a(f"ds_read_b128 {vr(XO+4,4)}, {vB} offset:{L_Q+128}")
    stamp(6)
    a("s_waitcnt lgkmcnt(0)")
    for lam in range(2):
        for B in range(4):
            a(f"v_mfma_f32_16x16x32_bf16 {vr(ACC+4*B,4)}, {vr(KD+8*B+4*lam,4)}, {vr(XO+4*lam,4)}, {'0' if lam==0 else vr(ACC+4*B,4)}")
    SC = TM
    for i in range(8):
        B = i >> 1; kk = i & 1
        a(f"v_add_f32_dpp {v(SC+(i&3))}, {v(ACC+4*B+2*kk+1)}, {v(ACC+4*B+2*kk)} quad_perm:[1,1,3,3] row_mask:0xf bank_mask:{'0x5' if i<4 else '0xa'}")
    for i in range(4): rnd(v(SC+i), v(SC+i))
    for i in range(4): a(f"v_mul_f32_dpp {v(SC+i)}, {v(SC+i)}, {v(Y+3)} quad_perm:[0,0,2,2] row_mask:0xf bank_mask:0xf")
    for i in range(4): rnd(v(SC+i), v(SC+i))
    a(f"v_max3_f32 {vA}, {v(SC)}, {v(SC+1)}, {v(SC+2)}")
    a(f"v_max_f32 {vA}, {vA}, {v(SC+3)}")
    a(f"v_max_f32_dpp {vA}, {vA}, {vA} row_half_mirror row_mask:0xf bank_mask:0xf")
    a(f"v_mov_b32 {vB}, {vA}")
    a(f"v_permlane32_swap_b32 {vA}, {vB}")
    a(f"v_max_f32 {vA}, {vA}, {vB}")
    a(f"v_mov_b32 {vB}, {vA}")
    a(f"v_permlane16_swap_b32 {vA}, {vB}")
    a(f"v_max_f32 {vA}, {vA}, {vB}")
    for i in range(4): a(f"v_sub_f32 {v(SC+i)}, {v(SC+i)}, {vA}")
    for i in range(4): a(f"v_mul_f32 {v(SC+i)}, {t0}, {v(SC+i)}")
    for i in range(4): a(f"v_exp_f32 {v(SC+i)}, {v(SC+i)}")
    a(f"v_add_f32 {vB}, {v(SC)}, {v(SC+1)}")
    a(f"v_add_f32 {v(Y)}, {v(SC+2)}, {v(SC+3)}")
    a(f"v_add_f32 {vB}, {vB}, {v(Y)}")
    for i in range(2): a(f"v_cvt_pk_bf16_f32 {v(XO+i)}, {v(SC+i)}, {v(SC+i)}")
    a(f"v_add_f32_dpp {vB}, {vB}, {vB} row_half_mirror row_mask:0xf bank_mask:0xf")
    a(f"v_mov_b32 {v(Y)}, {vB}")
    for i in range(2, 4): a(f"v_cvt_pk_bf16_f32 {v(XO+i)}, {v(SC+i)}, {v(SC+i)}")
    a(f"v_permlane32_swap_b32 {vB}, {v(Y)}")
    a(f"v_add_f32 {vB}, {vB}, {v(Y)}")
    a(f"v_mov_b32 {v(Y)}, {vB}")
    a(f"v_permlane16_swap_b32 {vB}, {v(Y)}")
    a(f"v_add_f32 {vB}, {vB}, {v(Y)}")
    a(f"ds_write2_b32 {v(Y+2)}, {vA}, {vB} offset0:{L_M//4} offset1:{L_L//4}")
    a("s_waitcnt lgkmcnt(0)")
    a("s_barrier")
    stamp(7)
    a(f"s_lshl_b32 {t0}, {sW}, 10")
    a(f"v_add_u32 {vA}, {t0}, {vV}")
    def pbuild(i):
        for t in range(4):
            if (t >> 1) == (i >> 2): a(f"v_and_b32 {v(KD+4*i+t)}, {v(XO+(i&3))}, {vPM[t]}")
            else: a(f"v_and_b32_dpp {v(KD+4*i+t)}, {v(XO+(i&3))}, {vPM[t]} row_half_mirror row_mask:0xf bank_mask:0xf")
    upto("V", 0)
    for i in range(8): pbuild(i)
    for i in range(8):
        upto("V", i)
        a(f"v_mfma_f32_16x16x32_bf16 {vr(ACC,4)}, {vr(KD+4*i,4)}, {vr(VD+4*i,4)}, {'0' if i==0 else vr(ACC,4)}")
    stamp(8)
    a(f"ds_write_b128 {vA}, {vr(ACC,4)} offset:{L_R4}")
    while st["n"] < len(seq): emit(st["n"]); st["n"] += 1
    a("s_waitcnt lgkmcnt(0)")
    a("s_barrier")
    a(f"s_cmp_eq_u32 {sType}, 3")
    a("s_cbranch_scc1 L_reduce")

    a("s_waitcnt vmcnt(2)")
    a("L_term:")
    perms(SD, WT)
    a(f"s_mov_b32 {sCnt}, {spin}")
    a("s_waitcnt vmcnt(0)")
    a("L_auxchk:")
    tagcheck(TM, 8, vB)
    a("s_cbranch_vccz L_auxok")
    a(f"buffer_load_dwordx4 {vr(TM,4)}, {vAux}, s[20:23], {sAux0} offen sc1")
    a(f"buffer_load_dwordx4 {vr(TM+4,4)}, {vAux}, s[20:23], {sAux1} offen sc1")
    a(f"s_sub_u32 {sCnt}, {sCnt}, 1")
    a("s_waitcnt vmcnt(0)")
    a("s_cbranch_scc0 L_auxchk")
    a("L_auxok:")
    stamp(9)
    a(f"s_cmp_eq_u32 {sType}, 1")
    a("s_cbranch_scc1 L_term_wo")
    c0 = -2 * math.sqrt(2 / math.pi) * LOG2E; c1 = c0 * 0.044715
    a(f"s_mov_b32 {t0}, {hx(c1)}")
    a(f"v_mov_b32 {vA}, {hx(c0)}")
    for i in range(8): a(f"v_and_b32 {v(TM+i)}, 0xffff0000, {v(TM+i)}")
    for i in range(4): a(f"v_mul_f32 {v(Y+i)}, {v(TM+i)}, {v(TM+i)}")
    for i in range(4): a(f"v_fma_f32 {v(Y+i)}, {v(Y+i)}, {t0}, {vA}")
    for i in range(4): a(f"v_mul_f32 {v(Y+i)}, {v(Y+i)}, {v(TM+i)}")
    for i in range(4): a(f"v_exp_f32 {v(Y+i)}, {v(Y+i)}")
    for i in range(4): a(f"v_add_f32 {v(Y+i)}, 1.0, {v(Y+i)}")
    for i in range(4): a(f"v_rcp_f32 {v(Y+i)}, {v(Y+i)}")
    for i in range(4): a(f"v_mul_f32 {v(Y+i)}, {v(Y+i)}, {v(TM+i)}")
    for i in range(4): rnd(v(Y+i), v(Y+i))
    for i in range(4): a(f"v_mul_f32 {v(Y+i)}, {v(Y+i)}, {v(TM+4+i)}")
    a(f"v_cvt_pk_bf16_f32 {v(TM)}, {v(Y)}, {v(Y+1)}")
    a(f"v_cvt_pk_bf16_f32 {v(TM+1)}, {v(Y+2)}, {v(Y+3)}")
    xoperands(v(TM), v(TM+1), (0, 1))
    for i in range(16): a(f"v_mov_b32 {v(ACC+i)}, 0")
    a(f"s_cmp_eq_u32 {sType}, 0")
    a("s_cbranch_scc1 L_term_u0")
    perms(SD+16, KD); mfmas(KD, XO+4, False)
    a("L_term_u0:")
    a("s_branch L_term_fin")
    a("L_term_wo:")
    OG = KD
    a(f"buffer_load_dwordx4 {vr(OG,4)}, {vOG}, s[20:23], {sOG} offen sc1")
    a(f"buffer_load_dwordx4 {vr(OG+4,4)}, {vOG}, s[20:23], {sOG} offen offset:1024 sc1")
    for i in (0, 1, 4, 5): a(f"v_and_b32 {v(TM+i)}, {sM}, {v(TM+i)}")
    a(f"v_max_f32 {vA}, {v(TM)}, {v(TM+4)}")
    a(f"s_mov_b32 {t0}, {hx(LOG2E)}")
    a(f"v_max_f32_dpp {vA}, {vA}, {vA} quad_perm:[1,0,3,2] row_mask:0xf bank_mask:0xf")
    a(f"v_sub_f32 {v(TM)}, {v(TM)}, {vA}")
    a(f"v_sub_f32 {v(TM+4)}, {v(TM+4)}, {vA}")
    a(f"v_mul_f32 {v(TM)}, {t0}, {v(TM)}")
    a(f"v_mul_f32 {v(TM+4)}, {t0}, {v(TM+4)}")
    a(f"v_exp_f32 {v(TM)}, {v(TM)}")
    a(f"v_exp_f32 {v(TM+4)}, {v(TM+4)}")
    a(f"v_mul_f32 {vA}, {v(TM)}, {v(TM+1)}")
    a(f"v_fmac_f32 {vA}, {v(TM+4)}, {v(TM+5)}")
    a(f"v_add_f32_dpp {vA}, {vA}, {vA} quad_perm:[1,0,3,2] row_mask:0xf bank_mask:0xf")
    a(f"v_rcp_f32 {vA}, {vA}")
    for i in range(16): a(f"v_mov_b32 {v(ACC+i)}, 0")
    a(f"v_mul_f32 {v(TM)}, {v(TM)}, {vA}")
    a(f"v_mul_f32 {v(TM+4)}, {v(TM+4)}, {vA}")
    stamp(10)
    a(f"s_mov_b32 {sCnt}, {spin}")
    a("s_waitcnt vmcnt(0)")
    a("L_ochk:")
    tagcheck(OG, 8, vB)
    a("s_cbranch_vccz L_ook")
    a(f"buffer_load_dwordx4 {vr(OG,4)}, {vOG}, s[20:23], {sOG} offen sc1")
    a(f"buffer_load_dwordx4 {vr(OG+4,4)}, {vOG}, s[20:23], {sOG} offen offset:1024 sc1")
    a(f"s_sub_u32 {sCnt}, {sCnt}, 1")
    a("s_waitcnt vmcnt(0)")
    a("s_cbranch_scc0 L_ochk")
    a("L_ook:")
    for i in range(8): a(f"v_and_b32 {v(OG+i)}, {sM}, {v(OG+i)}")
    for i in range(4): a(f"v_mul_f32 {v(OG+i)}, {v(OG+i)}, {v(TM)}")
    for i in range(4): a(f"v_fmac_f32 {v(OG+i)}, {v(OG+4+i)}, {v(TM+4)}")
    for i in range(4): a(f"v_add_f32_dpp {v(OG+i)}, {v(OG+i)}, {v(OG+i)} quad_perm:[1,0,3,2] row_mask:0xf bank_mask:0xf")
    a(f"v_cvt_pk_bf16_f32 {v(TM)}, {v(OG)}, {v(OG+1)}")
    a(f"v_cvt_pk_bf16_f32 {v(TM+1)}, {v(OG+2)}, {v(OG+3)}")
    for k, (src, mk) in enumerate(((TM, vM0), (TM+1, vM0), (TM, vM1), (TM+1, vM1))):
        a(f"v_and_b32 {v(XO+k)}, {v(src)}, {mk}")
    a("L_term_fin:")
    stamp(11)
    mfmas(WT, XO, False)
    a(f"s_lshl_b32 {t0}, {sW}, 10")
    a(f"v_add_u32 {vA}, {t0}, {vV}")
    densify(TM)
    a(f"s_cmp_eq_u32 {sW}, 8")
    a("s_cbranch_scc1 L_pub_fin")
    a(f"ds_write_b128 {vA}, {vr(TM,4)} offset:{L_R5}")
    a("s_waitcnt lgkmcnt(0)")
    a("s_barrier")
    a("s_branch L_done")

    def lds_sum(off, fma=None):
        for w in range(8): a(f"ds_read_b128 {vr(KD+4*w,4)}, {vV} offset:{off+1024*w}")
        for w in range(8):
            a(f"s_waitcnt lgkmcnt({7-w})")
            if fma is None:
                a(f"v_pk_add_f32 {vr(TM,2)}, {vr(TM,2)}, {vr(KD+4*w,2)}")
                a(f"v_pk_add_f32 {vr(TM+2,2)}, {vr(TM+2,2)}, {vr(KD+4*w+2,2)}")
            else:
                sb = w & 1
                for k in (0, 2):
                    if w == 0: a(f"v_pk_mul_f32 {vr(fma+8+k,2)}, {vr(KD+4*w+k,2)}, {vr(fma+(w&~1),2)} op_sel:[0,{sb}] op_sel_hi:[1,{sb}]")
                    else: a(f"v_pk_fma_f32 {vr(fma+8+k,2)}, {vr(KD+4*w+k,2)}, {vr(fma+(w&~1),2)}, {vr(fma+8+k,2)} op_sel:[0,{sb},0] op_sel_hi:[1,{sb},1]")
    a("L_pub_strip:")
    a(f"v_bfe_u32 {vA}, {vL}, 1, 2")
    a(f"v_mul_u32_u24 {vA}, {BST}, {vA}")
    a(f"v_lshrrev_b32 {vB}, 3, {vL}")
    a(f"v_lshl_add_u32 {vA}, {vB}, 5, {vA}")
    a(f"v_and_b32 {vB}, 1, {vL}")
    a(f"v_lshl_add_u32 {vA}, {vB}, 4, {vA}")
    a("s_barrier")
    lds_sum(L_R2)
    for k in range(4): rnd(v(TM+k), v(TM+k))
    addtags(TM)
    a(f"buffer_store_dwordx4 {vr(TM,4)}, {vA}, s[20:23], {sPubS} offen sc1")
    stamp(4)
    a("L_pub_q:")
    F = VD
    a(f"s_mov_b32 {sCnt}, {spin}")
    a("L_qpoll:")
    a(f"buffer_load_dwordx4 {vr(F,4)}, {vV}, s[20:23], {sQ} offen sc1")
    a(f"s_sub_u32 {sCnt}, {sCnt}, 1")
    a("s_waitcnt vmcnt(0)")
    a("s_cbranch_scc1 L_qok")
    tagcheck(F, 4, vB)
    a("s_cbranch_vccnz L_qpoll")
    a("L_qok:")
    stamp(5)
    a(f"v_perm_b32 {v(F)}, {v(F+1)}, {v(F)}, {sSelHi}")
    a(f"v_perm_b32 {v(F+1)}, {v(F+3)}, {v(F+2)}, {sSelHi}")
    a(f"v_lshlrev_b32 {vB}, 3, {vL}")
    a(f"ds_write_b64 {vB}, {vr(F,2)} offset:{L_Q}")
    a("s_waitcnt lgkmcnt(0)")
    a("s_barrier")
    a(f"v_lshrrev_b32 {vA}, 5, {vL}")
    a(f"v_lshlrev_b32 {vB}, 5, {vA}")
    a("s_barrier")
    a(f"ds_read_b128 {vr(F,4)}, {vB} offset:{L_M}")
    a(f"ds_read_b128 {vr(F+4,4)}, {vB} offset:{L_M+16}")
    a(f"ds_read_b128 {vr(F+16,4)}, {vB} offset:{L_L}")
    a(f"ds_read_b128 {vr(F+20,4)}, {vB} offset:{L_L+16}")
    a(f"s_mov_b32 {t0}, {hx(LOG2E)}")
    a(f"s_lshl_b32 {t1}, {sU}, 7")
    a(f"s_add_u32 {t1}, {t1}, {STB}")
    a(f"v_lshlrev_b32 {vB}, 4, {vA}")
    a("s_waitcnt lgkmcnt(0)")
    Z = F + 12
    a(f"v_max3_f32 {v(Z)}, {v(F)}, {v(F+1)}, {v(F+2)}")
    a(f"v_max3_f32 {v(Z)}, {v(Z)}, {v(F+3)}, {v(F+4)}")
    a(f"v_max3_f32 {v(Z)}, {v(Z)}, {v(F+5)}, {v(F+6)}")
    a(f"v_max_f32 {v(Z)}, {v(Z)}, {v(F+7)}")
    for w in range(8): a(f"v_sub_f32 {v(F+w)}, {v(F+w)}, {v(Z)}")
    for w in range(8): a(f"v_mul_f32 {v(F+w)}, {t0}, {v(F+w)}")
    for w in range(8): a(f"v_exp_f32 {v(F+w)}, {v(F+w)}")
    a(f"v_mul_f32 {v(Z+1)}, {v(F)}, {v(F+16)}")
    for w in range(1, 8): a(f"v_fmac_f32 {v(Z+1)}, {v(F+w)}, {v(F+16+w)}")
    addtags(Z)
    a("s_mov_b32 exec_lo, 1")
    a("s_mov_b32 exec_hi, 1")
    a(f"buffer_store_dwordx4 {vr(Z,4)}, {vB}, s[20:23], {t1} offen sc1")
    a("s_mov_b64 exec, -1")
    stamp(7)
    a(f"s_bitcmp1_b32 {sType}, 0")
    a("s_cbranch_scc1 L_pub_noT")
    a(f"buffer_load_dwordx4 {vr(TM,4)}, {vAux}, s[20:23], {sAux0} offen sc1")
    a(f"buffer_load_dwordx4 {vr(TM+4,4)}, {vAux}, s[20:23], {sAux1} offen sc1")
    for i in range(4): tload(i, sT)
    a("L_pub_noT:")
    a(f"v_and_b32 {vB}, 15, {vL}")
    a(f"v_lshl_add_u32 {vA}, {vA}, 4, {vB}")
    a(f"v_bfe_u32 {vB}, {vL}, 4, 1")
    a(f"v_lshl_add_u32 {vA}, {vA}, 1, {vB}")
    a(f"v_lshlrev_b32 {vA}, 4, {vA}")
    a(f"s_lshl_b32 {t1}, {sU}, 10")
    a(f"s_add_u32 {t1}, {t1}, {OB}")
    a("s_barrier")
    lds_sum(L_R4, fma=F)
    addtags(F+8)
    a(f"buffer_store_dwordx4 {vr(F+8,4)}, {vA}, s[20:23], {t1} offen sc1")
    stamp(8)
    a(f"s_cmp_eq_u32 {sType}, 3")
    a("s_cbranch_scc1 L_reduce")
    a(f"s_cmp_lg_u32 {sType}, 1")
    a("s_waitcnt vmcnt(1)")
    a("s_cbranch_scc1 L_term")
    for k in range(4): a(f"v_mov_b32 {v(TM+k)}, 0")
    a("L_pub_fin:")
    a("s_barrier")
    lds_sum(L_R5)
    addtags(TM)
    a(f"buffer_store_dwordx4 {vr(TM,4)}, {vV}, s[20:23], {sPubP} offen sc1")
    stamp(12)
    a("s_branch L_done")

    a("L_reduce:")
    R = SD
    a("s_waitcnt vmcnt(0)")
    a(f"v_lshrrev_b32 {vA}, 3, {vL}")
    a(f"v_lshlrev_b32 {vA}, 10, {vA}")
    a(f"v_and_b32 {vB}, 7, {vL}")
    a(f"v_lshl_add_u32 {vA}, {vB}, 4, {vA}")
    a(f"s_lshl_b32 {t0}, {sW}, 15")
    a(f"s_lshl_b32 {t1}, {sX}, 7")
    a(f"s_add_u32 {t0}, {t0}, {t1}")
    a(f"s_add_u32 {t0}, {t0}, {PB}")
    a(f"s_add_u32 {t1}, {t0}, 8192")
    a(f"s_add_u32 {t2}, {t0}, 16384")
    a(f"s_add_u32 {t3}, {t0}, 24576")
    a(f"s_cmp_lt_u32 {sW}, 5")
    a(f"s_cselect_b32 {t3}, {t2}, {t3}")
    a(f"s_cselect_b32 {sAux0}, 0, {sM}")
    a(f"v_bfe_u32 {vB}, {vL}, 1, 2")
    a(f"v_mul_u32_u24 {vB}, 1152, {vB}")
    a(f"v_and_b32 {vK}, 1, {vL}")
    a(f"v_lshl_add_u32 {vB}, {vK}, 3, {vB}")
    a(f"v_lshrrev_b32 {vK}, 4, {vL}")
    a(f"v_lshl_add_u32 {vK}, {vK}, 1, {vB}")
    a(f"s_lshl_b32 {sAux1}, {sW}, 3")
    a(f"s_add_u32 {sAux1}, {sAux1}, {sX}")
    a(f"s_lshl_b32 {sAux1}, {sAux1}, 4")
    a(f"buffer_load_ushort {vT}, {vK}, s[24:27], {sAux1} offen")
    a(f"s_mov_b32 {sCnt}, {spin}")
    a("L_rpoll:")
    for t, so in enumerate((t0, t1, t2, t3)):
        a(f"buffer_load_dwordx4 {vr(R+4*t,4)}, {vA}, s[20:23], {so} offen sc1")
    a(f"s_sub_u32 {sCnt}, {sCnt}, 1")
    a("s_cbranch_scc1 L_rok")
    a("s_waitcnt vmcnt(0)")
    tagcheck(R, 16, vB)
    a("s_cbranch_vccnz L_rpoll")
    a("L_rok:")
    a("s_waitcnt vmcnt(0)")
    stamp(11)
    for i in range(16): a(f"v_and_b32 {v(R+i)}, {sM if i<12 else sAux0}, {v(R+i)}")
    for i in (0, 2, 8, 10): a(f"v_pk_add_f32 {vr(R+i,2)}, {vr(R+i,2)}, {vr(R+i+4,2)}")
    for i in (0, 1, 8, 9): a(f"v_permlane32_swap_b32 {v(R+i)}, {v(R+i+2)}")
    for i in (0, 8): a(f"v_pk_add_f32 {vr(R+i,2)}, {vr(R+i,2)}, {vr(R+i+2,2)}")
    for i in (0, 8): a(f"v_permlane16_swap_b32 {v(R+i)}, {v(R+i+1)}")
    for i in (8, 0): a(f"v_add_f32 {v(R+i)}, {v(R+i)}, {v(R+i+1)}")
    for i in (8, 0): a(f"v_add_f32_dpp {v(R+i)}, {v(R+i)}, {v(R+i)} row_ror:8 row_mask:0xf bank_mask:0xf")
    rnd(v(R+8), v(R+8)); rnd(v(R), v(R))
    a(f"v_mul_f32 {vA}, {hx(-LOG2E)}, {v(R+8)}")
    a(f"v_exp_f32 {vA}, {vA}")
    a(f"v_lshlrev_b32 {vT}, 16, {vT}")
    a(f"v_add_f32 {vA}, 1.0, {vA}")
    a(f"v_rcp_f32 {vA}, {vA}")
    a(f"v_mul_f32 {vA}, {vA}, {v(R+8)}")
    rnd(vA, vA)
    a(f"v_mul_f32 {vA}, {vA}, {v(R)}")
    rnd(vA, vA)
    a(f"v_add_f32 {vA}, {vA}, {vT}")
    a(f"v_cvt_pk_bf16_f32 {vA}, {vA}, {vA}")
    a("s_mov_b32 exec_lo, 0x00ff00ff")
    a("s_mov_b32 exec_hi, 0x00ff00ff")
    a(f"buffer_store_short {vA}, {vK}, s[28:31], {sAux1} offen")
    stamp(12)
    a(f"s_cmp_lg_u32 {sAux1}, 0")
    a("s_cbranch_scc1 L_done")
    a("s_mov_b64 exec, 1")
    a(f"v_mov_b32 {vA}, {sTag}")
    a(f"v_mov_b32 {vB}, 0")
    a(f"buffer_store_dword {vA}, {vB}, s[20:23], 0 offen sc1")
    a("L_done:")
    if stamps:
        a("s_mov_b64 exec, -1")
        a("s_waitcnt vmcnt(0)")
        stamp(13)
        a("s_waitcnt lgkmcnt(0)")
        a(f"s_mul_i32 {t0}, s2, 9")
        a(f"s_add_u32 {t0}, {t0}, {sW}")
        a(f"s_lshl_b32 {t0}, {t0}, 6")
        a(f"s_add_u32 {t0}, {t0}, {STAMP}")
        a(f"v_mov_b32 {vA}, 0")
        for i in range(nst[0]): a(f"v_writelane_b32 {vA}, s{60+2*i}, {i}")
        a(f"v_lshlrev_b32 {vB}, 2, {vL}")
        a("s_mov_b64 exec, 0xffff")
        a(f"buffer_store_dword {vA}, {vB}, s[20:23], {t0} offen")
    a("L_end:")
    a("s_endpgm")
    body, n = hazard.fix(a.text(), verbose=False)
    txt = HEADER + f"; @launch grid=(256,1,1) block=(576,1,1) lds={L_END}\n" + file_begin() + kernel_begin(name) + body + kernel_desc(name, 168, sgpr=96, extra="  .amdhsa_float_denorm_mode_32 3\n")
    open(fname, "w").write(txt)
    print(fname, "nops inserted", n)

if __name__ == "__main__":
    gen("v2.s")
    gen("v2_st.s", stamps=True)
    gen("v2_def.s", policy="")
    gen("v2_w4.s", W=4)
    gen("v2_w4_st.s", W=4, stamps=True)
```

```python
import sys, math, struct
from common import *
import hazard

def f2u(x): return struct.unpack("<I", struct.pack("<f", x))[0]
def hx(x): return f"0x{f2u(x):08x}"

SB  = 0x10000
STB = 0x50000
OB  = 0x60000
PB  = 0xA0000
WS_USED = 0x100000
STAMP = 128 << 20
BST = 53248
L_LN = 0; L_M = 384; L_L = 448; L_Q = 512; L_R2 = 1024; L_R4 = L_R2 + 8192; L_R5 = L_R4 + 8192; L_END = L_R5 + 8192

LOG2E = 1.4426950408889634
SCALE = 128 ** -0.5

def gen(fname, policy="nt", stamps=False, prefetch=True, spin=20000, W=5, amp=None):
    if amp: stamps = True
    a = Asm()
    name = KNAME + "_kernel"
    P = policy
    sTag = "s32"; sX = "s33"; sJ = "s34"; sW = "s3"
    T = ["s32", "s37", "s38", "s39"]
    sSelLo = "s40"; sSelHi = "s41"
    sKV = "s42"
    sS = "s43"
    sStr = "s44"
    sT = "s45"
    sAux0 = "s46"; sAux1 = "s47"
    sQ = "s48"
    sPubS = "s49"
    sPubP = "s50"
    sOG = "s51"
    sType = "s52"
    sU = "s53"
    sCnt = "s54"
    sM = "s55"
    t0, t1, t2, t3 = "s56", "s57", "s58", "s59"
    nst = [0]
    def stamp(i):
        if stamps:
            a(f"s_memrealtime s[{60+2*i}:{61+2*i}]")
            nst[0] = max(nst[0], i + 1)
    vL = "v0"; vS = "v1"; vT = "v2"; vK = "v3"; vV = "v4"; vM0 = "v5"; vM1 = "v6"
    vAux = "v7"; vOG = "v8"; vPM = [f"v{9+i}" for i in range(4)]; vFF = "v13"; vA = "v14"; vB = "v15"
    SD = 16; KD = 48; VD = 80; ACC = 112; WT = 128; XO = 144; TM = 152
    def v(i): return f"v{i}"
    def vr(i, n): return f"v[{i}:{i+n-1}]"

    if stamps:
        for i in range(60, 92, 2): a(f"s_mov_b64 s[{i}:{i+1}], 0")
    stamp(0)
    a("s_cmp_ge_u32 s2, 256")
    a("s_cbranch_scc1 L_end")
    a(f"s_and_b32 {sX}, s2, 7")
    a(f"s_lshr_b32 {sJ}, s2, 3")
    a(f"s_cmp_lt_u32 {sJ}, 17")
    a(f"s_cselect_b32 {t0}, 48, 56")
    a(f"s_cselect_b32 {t2}, 8, 17")
    a(f"s_cmp_lt_u32 {sJ}, 8")
    a(f"s_cselect_b32 {t0}, 24, {t0}")
    a(f"s_load_dwordx2 s[4:5], s[0:1], {t0}")
    a("s_load_dwordx2 s[24:25], s[0:1], 0")
    a("s_load_dwordx2 s[8:9], s[0:1], 8")
    a("s_load_dwordx2 s[20:21], s[0:1], 88")
    a(f"s_sub_u32 {t1}, {sJ}, 8")
    a(f"s_cmp_lt_u32 {t1}, 18")
    a(f"s_cselect_b32 {t1}, 32, 64")
    a(f"s_cselect_b32 s18, 8, 9")
    a(f"s_mul_i32 s18, s18, 589824")
    a(f"s_load_dwordx2 s[16:17], s[0:1], {t1}")
    a("s_load_dwordx2 s[12:13], s[0:1], 16")
    a("s_load_dwordx2 s[28:29], s[0:1], 72")
    a("v_lshrrev_b32 v1, 6, v0")
    a("v_and_b32 v0, 63, v0")
    a("v_readfirstlane_b32 s3, v1")
    a(f"s_cmp_lg_u32 {sW}, 8")
    a("s_cbranch_scc1 L_noprio")
    a("s_setprio 3")
    a("L_noprio:")
    a(f"s_cmp_lt_u32 {sJ}, 8")
    a(f"s_cselect_b32 {t0}, 8, 9")
    a(f"s_cselect_b32 {t2}, 0, {t2}")
    a(f"s_lshl_b32 {sStr}, {t0}, 10")
    a(f"s_mul_i32 s6, {t0}, 589824")
    a(f"s_mul_i32 {t0}, {t0}, {sX}")
    a(f"s_add_u32 {t0}, {t0}, {sJ}")
    a(f"s_sub_u32 {t0}, {t0}, {t2}")
    a(f"s_lshl_b32 {t3}, {t2}, 3")
    a(f"s_add_u32 {t3}, {t3}, {t0}")
    a(f"s_lshl_b32 {sPubS}, {t3}, 8")
    a(f"s_add_u32 {sPubS}, {sPubS}, {SB}")
    a(f"s_lshl_b32 {t0}, {t0}, 7")
    a(f"s_lshl_b32 {t1}, {sW}, 5")
    a(f"s_mul_i32 {sS}, {t1}, {sStr}")
    a(f"s_add_u32 {sS}, {sS}, {t0}")
    for r in (7, 11, 15, 19, 23, 27, 31): a(f"s_mov_b32 s{r}, 0x20000")
    a(f"s_mov_b32 s26, {SZ['x']}")
    a(f"v_lshrrev_b32 {vA}, 4, {vL}")
    a(f"v_bfe_u32 {vB}, {vL}, 1, 1")
    a(f"v_lshl_add_u32 {vB}, {vB}, 2, {vA}")
    a(f"v_bfe_u32 v16, {vL}, 2, 2")
    a(f"v_and_b32 v17, 1, {vL}")
    a(f"v_lshl_add_u32 v16, v16, 1, v17")
    a(f"v_lshlrev_b32 v16, 4, v16")
    a(f"s_lshl_b32 {t0}, {sStr}, 2")
    a(f"v_mad_u32_u24 {vS}, {vB}, {t0}, v16")
    a(f"v_mul_u32_u24 {vT}, {4*1152}, {vB}")
    a(f"v_add_u32 {vT}, {vT}, v16")
    a(f"v_bfe_u32 v18, {vL}, 3, 1")
    a(f"v_lshl_add_u32 v18, v18, 2, {vA}")
    a(f"v_bfe_u32 v19, {vL}, 1, 2")
    a(f"v_mul_u32_u24 v20, 1152, v19")
    a(f"v_mul_u32_u24 v21, 576, v17")
    a(f"v_lshlrev_b32 v22, 3, v18")
    a(f"v_add3_u32 v20, v20, v21, v22")
    a(f"s_lshl_b32 {t1}, {sW}, 6")
    a(f"s_cmp_ge_u32 {sJ}, 26")
    a("s_waitcnt lgkmcnt(0)")
    a(f"s_load_dword {sTag}, s[20:21], 0")
    a("s_cbranch_scc1 L_nostrip_issue")
    a(f"buffer_load_dwordx2 {vr(TM,2)}, v20, s[24:27], {t1} offen")
    a(f"v_mov_b32 {v(TM+2)}, v17")
    a(f"v_mov_b32 {v(TM+3)}, v18")
    a(f"v_mov_b32 {v(TM+4)}, v19")
    def sload(i):
        a(f"buffer_load_dwordx4 {vr(SD+4*i,4)}, {vS}, s[4:7], {sS} offen {P}")
        if i == 3:
            a(f"s_mul_i32 s35, {sStr}, 285")
            a(f"s_add_u32 {sS}, {sS}, s35")
        elif i < 7:
            a(f"s_add_u32 {sS}, {sS}, {sStr}")
    for i in range(W-1): sload(i)
    a("s_branch L_setup2")
    a("L_nostrip_issue:")
    a(f"v_mov_b32 {v(TM+2)}, v17")
    a(f"v_mov_b32 {v(TM+3)}, v18")
    a(f"v_mov_b32 {v(TM+4)}, v19")
    a("L_setup2:")
    stamp(14)
    vSel = v(TM+2); vKG = v(TM+3); vBb = v(TM+4)
    a(f"s_mov_b32 s22, {SZ['ws']}")
    a(f"s_mov_b32 s30, {SZ['out']}")
    a(f"s_mov_b32 s10, {SZ['k']}")
    a(f"s_mov_b32 s14, {SZ['v']}")
    a(f"s_mov_b32 {sSelLo}, 0x05040100")
    a(f"s_mov_b32 {sSelHi}, 0x07060302")
    a(f"s_mov_b32 {sM}, 0xffffff00")
    a(f"s_lshl_b32 {sU}, {sX}, 5")
    a(f"s_add_u32 {sU}, {sU}, {sJ}")
    a(f"s_lshr_b32 {t0}, {sU}, 4")
    a(f"s_bfe_u32 {t1}, {sJ}, 0x20002")
    a(f"s_lshl_b32 {sQ}, {t0}, 10")
    a(f"s_mul_i32 {t2}, {t1}, {BST}")
    a(f"s_add_u32 {sQ}, {sQ}, {t2}")
    a(f"s_add_u32 {sQ}, {sQ}, {SB}")
    a(f"s_lshl_b32 {t1}, {t1}, 4")
    a(f"s_add_u32 {t0}, {t0}, {t1}")
    a(f"s_lshl_b32 {sKV}, {t0}, 20")
    a(f"s_and_b32 {t0}, {sJ}, 3")
    a(f"s_lshl_b32 {t0}, {t0}, 3")
    a(f"s_and_b32 {t1}, {sW}, 7")
    a(f"s_add_u32 {t0}, {t0}, {t1}")
    a(f"s_lshl_b32 {t0}, {t0}, 13")
    a(f"s_add_u32 {sKV}, {sKV}, {t0}")
    a(f"s_add_u32 {sKV}, {sKV}, {768*1024}")
    a(f"v_bfe_u32 {vK}, {vL}, 2, 2")
    a(f"v_bfe_u32 {vB}, {vL}, 1, 1")
    a(f"v_lshl_add_u32 {vK}, {vB}, 2, {vK}")
    a(f"v_lshlrev_b32 {vK}, 8, {vK}")
    a(f"v_lshl_add_u32 {vK}, {vA}, 5, {vK}")
    a(f"v_lshl_add_u32 {vK}, {vSel}, 4, {vK}")
    a(f"v_lshlrev_b32 {vV}, 4, {vL}")
    a(f"v_subrev_u32 {vM0}, 1, {vSel}")
    a(f"v_not_b32 {vM1}, {vM0}")
    a(f"v_mov_b32 {vFF}, 0xff")
    a(f"s_sub_u32 {t0}, {sJ}, 8")
    a(f"s_cmp_lt_u32 {t0}, 18")
    a("s_cbranch_scc1 L_type_wo")
    a(f"s_lshr_b32 {t0}, {sJ}, 1")
    a(f"s_add_u32 {t0}, {t0}, 5")
    a(f"s_sub_u32 {t1}, {sJ}, 26")
    a(f"s_and_b32 {t2}, {sJ}, 1")
    a(f"s_cmp_lt_u32 {sJ}, 8")
    a(f"s_cselect_b32 {t0}, {t0}, {t1}")
    a(f"s_cselect_b32 {t2}, {t2}, 0")
    a(f"s_cselect_b32 {sType}, 0, 2")
    a(f"s_cselect_b32 {t3}, 0, {72*16}")
    a(f"s_cmp_eq_u32 {sJ}, 31")
    a(f"s_cselect_b32 {sType}, 3, {sType}")
    a(f"s_cselect_b32 s18, 0, s18")
    a(f"v_mul_u32_u24 {vAux}, {BST}, {vBb}")
    a(f"v_lshl_add_u32 {vAux}, {vKG}, 4, {vAux}")
    a(f"v_mad_u32_u24 {vAux}, {vSel}, {t3}, {vAux}")
    a(f"v_mov_b32 {vOG}, 0")
    a(f"s_mov_b32 {sOG}, 0")
    a(f"s_lshl_b32 {t1}, {sX}, 1")
    a(f"s_add_u32 {t1}, {t1}, {t2}")
    a(f"s_mul_i32 {t3}, {t1}, 9")
    a(f"s_add_u32 {t3}, {t3}, {sW}")
    a(f"s_lshl_b32 {sAux0}, {t3}, 7")
    a(f"s_add_u32 {sAux0}, {sAux0}, {SB + 64*256}")
    a(f"s_add_u32 {sAux1}, {sAux0}, {72*256}")
    a(f"s_lshl_b32 {t2}, {t2}, 3")
    a(f"s_add_u32 {t2}, {t2}, {sX}")
    a(f"s_add_u32 {t2}, {t2}, 16")
    a("s_branch L_type_done")
    a("L_type_wo:")
    a(f"s_cmp_ge_u32 {t0}, 9")
    a(f"s_cselect_b32 {t1}, 9, 0")
    a(f"s_cselect_b32 {t2}, 1, 0")
    a(f"s_sub_u32 {t0}, {t0}, {t1}")
    a(f"s_lshl_b32 {t1}, {sX}, 1")
    a(f"s_add_u32 {t2}, {t2}, {t1}")
    a(f"s_mov_b32 {sType}, 1")
    a(f"v_lshl_add_u32 {vB}, {vBb}, 1, {vSel}")
    a(f"v_lshlrev_b32 {vAux}, 8, {vB}")
    a(f"v_lshlrev_b32 {vOG}, 11, {vB}")
    a(f"v_lshl_add_u32 {vOG}, {vKG}, 4, {vOG}")
    a(f"s_lshl_b32 {sAux0}, {t2}, 11")
    a(f"s_bfe_u32 {t1}, {sW}, 0x10002")
    a(f"s_lshl_b32 {t1}, {t1}, 4")
    a(f"s_add_u32 {sAux0}, {sAux0}, {t1}")
    a(f"s_add_u32 {sAux0}, {sAux0}, {STB}")
    a(f"s_add_u32 {sAux1}, {sAux0}, 128")
    a(f"s_lshl_b32 {sOG}, {t2}, 14")
    a(f"s_lshl_b32 {t1}, {sW}, 7")
    a(f"s_add_u32 {sOG}, {sOG}, {t1}")
    a(f"s_add_u32 {sOG}, {sOG}, {OB}")
    a(f"s_lshl_b32 {t3}, {t2}, 3")
    a(f"s_add_u32 {t3}, {t3}, {sW}")
    a("L_type_done:")
    a(f"s_mul_i32 {sT}, {t3}, {32*1152}")
    a(f"s_lshl_b32 {t1}, {t0}, 7")
    a(f"s_add_u32 {sT}, {sT}, {t1}")
    a(f"s_lshl_b32 {t0}, {t0}, 5")
    a(f"s_add_u32 {t0}, {t0}, {t2}")
    a(f"s_lshl_b32 {sPubP}, {t0}, 10")
    a(f"s_add_u32 {sPubP}, {sPubP}, {PB}")
    a(f"v_and_b32 {vB}, 1, {vL}")
    a(f"v_lshlrev_b32 {vB}, 4, {vB}")
    a(f"v_mov_b32 {v(TM+5)}, 0xffff")
    a(f"v_lshlrev_b32 {vB}, {vB}, {v(TM+5)}")
    for t in range(4):
        a(f"v_cmp_eq_u32 vcc, {t}, {vBb}")
        a(f"v_cndmask_b32 {vPM[t]}, 0, {vB}, vcc")
    a("s_waitcnt lgkmcnt(0)")
    a(f"s_mul_i32 {sTag}, {sTag}, 1664525")
    a(f"s_add_u32 {sTag}, {sTag}, 1013904223")
    for k in (1, 2, 3): a(f"s_lshr_b32 {T[k]}, {sTag}, {8*k}")

    def kload(i): a(f"buffer_load_dwordx4 {vr(KD+4*i,4)}, {vK}, s[8:11], {sKV if i<4 else t3} offen offset:{((i>>1)&1)*2048 + (i&1)*128} {P}")
    def vload(i): a(f"buffer_load_dwordx4 {vr(VD+4*i,4)}, {vV}, s[12:15], {sKV if i<4 else t3} offen offset:{(i&3)*1024} {P}")
    def tload(i, so): a(f"buffer_load_dwordx4 {vr(SD+4*i,4)}, {vT}, s[16:19], {so} offen offset:{(i&3)*1152} {P}")
    def perms(src, dst):
        for m in range(4):
            for hh in range(2):
                j = m + 4*hh
                for pr in range(2):
                    lo = src + 8*pr + (j >> 1); hi = lo + 4
                    a(f"v_perm_b32 {v(dst+4*m+2*hh+pr)}, {v(hi)}, {v(lo)}, {sSelHi if j&1 else sSelLo}")
    def mfmas(wsrc, xo, first):
        for m in range(4):
            c = "0" if first else vr(ACC+4*m, 4)
            a(f"v_mfma_f32_16x16x32_bf16 {vr(ACC+4*m,4)}, {vr(wsrc+4*m,4)}, {vr(xo,4)}, {c}")
    def densify(dst):
        for m in range(4):
            a(f"v_add_f32_dpp {v(dst+m)}, {v(ACC+4*m+2)}, {v(ACC+4*m)} row_ror:8 row_mask:0xf bank_mask:0x3")
        for m in range(4):
            a(f"v_add_f32_dpp {v(dst+m)}, {v(ACC+4*m+1)}, {v(ACC+4*m+3)} row_ror:8 row_mask:0xf bank_mask:0xc")
    def xoperands(p01, p23, units):
        for u in units:
            qp = "[0,0,2,2]" if u == 0 else "[1,1,3,3]"
            for k, (src, mk) in enumerate(((p01, vM0), (p23, vM0), (p01, vM1), (p23, vM1))):
                a(f"v_and_b32_dpp {v(XO+4*u+k)}, {src}, {mk} quad_perm:{qp} row_mask:0xf bank_mask:0xf")
    def tagcheck(base, n, acc):
        a(f"v_xor_b32 {acc}, {T[0]}, {v(base)}")
        for k in range(1, n):
            a(f"v_bitop3_b32 {acc}, {acc}, {v(base+k)}, {T[k&3]} bitop3:0xf6")
        a(f"v_and_b32 {acc}, 0xff, {acc}")
        a(f"v_cmp_ne_u32 vcc, 0, {acc}")
    def addtags(base):
        for k in range(4):
            a(f"v_bfi_b32 {v(base+k)}, {vFF}, {T[k]}, {v(base+k)}")
    def rnd(d, s): a(f"v_cvt_pk_bf16_f32 {d}, 0, {s}")

    a(f"s_add_u32 {t3}, {sKV}, 4096")
    a(f"s_cmp_ge_u32 {sJ}, 26")
    a("s_cbranch_scc0 L_ln")
    if prefetch:
        a(f"s_cmp_lg_u32 {sW}, 8")
        a("s_cbranch_scc1 L_nopf")
        a("s_getpc_b64 s[92:93]")
        a(f"v_lshlrev_b32 {vB}, 7, {vL}")
        a(f"v_min_u32 {vB}, (L_end - L_ln) & 0xfffffffc, {vB}")
        a(f"global_load_dword {vB}, {vB}, s[92:93]")
        a("L_nopf:")
    a(f"s_add_u32 {t0}, {sT}, {288*1152}")
    for i in range(4, 8): tload(i, t0)
    a(f"s_cmp_eq_u32 {sW}, 8")
    a("s_cbranch_scc1 L_pub_q")
    for i in range(W):
        if 4 + i >= W: a(f"s_waitcnt vmcnt({W-1})")
        kload(i)
    a("s_branch L_attn")

    a("L_ln:")
    a(f"s_waitcnt vmcnt({W-1})")
    stamp(1)
    sload(W-1)
    X = TM + 8
    a(f"v_lshlrev_b32 {v(X)}, 16, {v(TM)}")
    a(f"v_and_b32 {v(X+1)}, 0xffff0000, {v(TM)}")
    a(f"v_lshlrev_b32 {v(X+2)}, 16, {v(TM+1)}")
    a(f"v_and_b32 {v(X+3)}, 0xffff0000, {v(TM+1)}")
    a(f"v_add_f32 {vA}, {v(X)}, {v(X+1)}")
    a(f"v_mul_f32 {vB}, {v(X)}, {v(X)}")
    a(f"v_add_f32 {vA}, {vA}, {v(X+2)}")
    a(f"v_fmac_f32 {vB}, {v(X+1)}, {v(X+1)}")
    a(f"v_add_f32 {vA}, {vA}, {v(X+3)}")
    a(f"v_fmac_f32 {vB}, {v(X+2)}, {v(X+2)}")
    a(f"v_fmac_f32 {vB}, {v(X+3)}, {v(X+3)}")
    a(f"v_mul_u32_u24 {v(TM)}, 80, {vBb}")
    a(f"v_lshrrev_b32 {v(TM+1)}, 5, {vL}")
    a(f"v_permlane32_swap_b32 {vA}, {vB}")
    a(f"v_add_f32 {vA}, {vA}, {vB}")
    a(f"v_lshl_add_u32 {v(TM+1)}, {v(TM+1)}, 2, {v(TM)}")
    a(f"s_lshl_b32 {t0}, {sW}, 3")
    a(f"v_add_f32_dpp {vA}, {vA}, {vA} quad_perm:[1,0,3,2] row_mask:0xf bank_mask:0xf")
    a(f"v_add_u32 {v(TM+1)}, {t0}, {v(TM+1)}")
    a(f"v_add_f32_dpp {vA}, {vA}, {vA} row_ror:8 row_mask:0xf bank_mask:0xf")
    a(f"v_mov_b32 {vB}, {vA}")
    a(f"v_permlane16_swap_b32 {vA}, {vB}")
    a(f"v_add_f32 {vA}, {vA}, {vB}")
    a(f"ds_write_b32 {v(TM+1)}, {vA} offset:{L_LN}")
    a("s_waitcnt lgkmcnt(0)")
    a("s_barrier")
    for i in range(4): a(f"ds_read_b128 {vr(ACC+4*i,4)}, {v(TM)} offset:{L_LN+16*i}")
    a(f"ds_read_b64 {vr(ACC+16,2)}, {v(TM)} offset:{L_LN+64}")
    a("s_waitcnt lgkmcnt(0)")
    for i in range(1, 9): a(f"v_pk_add_f32 {vr(ACC,2)}, {vr(ACC,2)}, {vr(ACC+2*i,2)}")
    a(f"v_mul_f32 {vA}, {hx(1/576)}, {v(ACC)}")
    a(f"v_mul_f32 {vB}, {hx(1/576)}, {v(ACC+1)}")
    a(f"v_fma_f32 {vB}, -{vA}, {vA}, {vB}")
    a(f"v_max_f32 {vB}, 0, {vB}")
    rnd(vA, vA); rnd(vB, vB)
    a(f"v_add_f32 {vB}, {hx(1e-5)}, {vB}")
    rnd(vB, vB)
    a(f"v_sqrt_f32 {vB}, {vB}")
    for i in range(4): a(f"v_sub_f32 {v(X+i)}, {v(X+i)}, {vA}")
    rnd(vB, vB)
    a(f"v_rcp_f32 {vB}, {vB}")
    for i in range(4): rnd(v(X+i), v(X+i))
    for i in range(4): a(f"v_mul_f32 {v(X+i)}, {v(X+i)}, {vB}")
    a(f"v_cvt_pk_bf16_f32 {v(TM)}, {v(X)}, {v(X+1)}")
    a(f"v_cvt_pk_bf16_f32 {v(TM+1)}, {v(X+2)}, {v(X+3)}")
    xoperands(v(TM), v(TM+1), (0, 1))
    stamp(2)
    seq = [("S", i) for i in range(8)] + [("K", i) for i in range(8)] + [("V", i) for i in range(8)] + [("T", i) for i in range(4)] + [("A", 0), ("A", 1)]
    st = dict(n=W, landed=-1)
    def emit(k):
        t, i = seq[k]
        if t == "S": sload(i)
        elif t == "K": kload(i)
        elif t == "V": vload(i)
        elif t == "T": tload(i, sT)
        else: a(f"buffer_load_dwordx4 {vr(TM+4*i,4)}, {vAux}, s[20:23], {(sAux0, sAux1)[i]} offen sc1")
    def need(t, i):
        k = seq.index((t, i))
        assert k < st["n"]
        if k > st["landed"]:
            a(f"s_waitcnt vmcnt({st['n'] - 1 - k})")
            st["landed"] = k
    def fill():
        while st["n"] < len(seq) and (st["n"] - W <= st["landed"] or seq[st["n"]][0] == "A"):
            emit(st["n"]); st["n"] += 1
    def upto(t, i):
        k = seq.index((t, i))
        while st["landed"] < k:
            need(*seq[st["landed"] + 1]); fill()
    upto("S", 7 - W)
    a(f"s_cmp_eq_u32 {sW}, 8")
    a("s_cbranch_scc1 L_p1")
    upto("S", 3)
    a("s_branch L_u0")
    a("L_p1:")
    a("s_waitcnt vmcnt(0)")
    a("L_u0:")
    perms(SD, WT); mfmas(WT, XO, True)
    a("s_cbranch_scc1 L_u1")
    upto("S", 7)
    a("L_u1:")
    stamp(3)
    perms(SD+16, WT); mfmas(WT, XO+4, False)
    a(f"s_lshl_b32 {t0}, {sW}, 10")
    a(f"v_add_u32 {vA}, {t0}, {vV}")
    densify(TM)
    a(f"s_cmp_eq_u32 {sW}, 8")
    a("s_cbranch_scc1 L_pub_strip")
    a(f"ds_write_b128 {vA}, {vr(TM,4)} offset:{L_R2}")
    a("s_waitcnt lgkmcnt(0)")
    a("s_barrier")

    a("L_attn:")
    assert st["n"] == 8 + W
    a(f"v_bfe_u32 {vA}, {vL}, 3, 1")
    a(f"v_lshrrev_b32 {vB}, 4, {vL}")
    a(f"v_lshl_add_u32 {vB}, {vA}, 3, {vB}")
    a(f"v_and_b32 {v(TM)}, 1, {vL}")
    a(f"v_lshl_add_u32 {vB}, {vB}, 1, {v(TM)}")
    a(f"v_lshlrev_b32 {vB}, 4, {vB}")
    Y = TM + 8
    a(f"s_lshl_b32 {t0}, {sW}, 2")
    a(f"v_lshl_add_u32 {v(Y+2)}, {vA}, 5, {t0}")
    a(f"v_mov_b32 {v(Y+3)}, {hx(SCALE)}")
    a(f"s_mov_b32 {t0}, {hx(LOG2E)}")
    stamp(4)
    upto("K", 7)
    stamp(5)
    a("s_barrier")
    a(f"ds_read_b128 {vr(XO,4)}, {vB} offset:{L_Q}")
    a(f"ds_read_b128 {vr(XO+4,4)}, {vB} offset:{L_Q+128}")
    stamp(6)
    a("s_waitcnt lgkmcnt(0)")
    for lam in range(2):
        for B in range(4):
            a(f"v_mfma_f32_16x16x32_bf16 {vr(ACC+4*B,4)}, {vr(KD+8*B+4*lam,4)}, {vr(XO+4*lam,4)}, {'0' if lam==0 else vr(ACC+4*B,4)}")
    SC = TM
    for i in range(8):
        B = i >> 1; kk = i & 1
        a(f"v_add_f32_dpp {v(SC+(i&3))}, {v(ACC+4*B+2*kk+1)}, {v(ACC+4*B+2*kk)} quad_perm:[1,1,3,3] row_mask:0xf bank_mask:{'0x5' if i<4 else '0xa'}")
    for i in range(4): rnd(v(SC+i), v(SC+i))
    for i in range(4): a(f"v_mul_f32_dpp {v(SC+i)}, {v(SC+i)}, {v(Y+3)} quad_perm:[0,0,2,2] row_mask:0xf bank_mask:0xf")
    for i in range(4): rnd(v(SC+i), v(SC+i))
    a(f"v_max3_f32 {vA}, {v(SC)}, {v(SC+1)}, {v(SC+2)}")
    a(f"v_max_f32 {vA}, {vA}, {v(SC+3)}")
    a(f"v_max_f32_dpp {vA}, {vA}, {vA} row_half_mirror row_mask:0xf bank_mask:0xf")
    a(f"v_mov_b32 {vB}, {vA}")
    a(f"v_permlane32_swap_b32 {vA}, {vB}")
    a(f"v_max_f32 {vA}, {vA}, {vB}")
    a(f"v_mov_b32 {vB}, {vA}")
    a(f"v_permlane16_swap_b32 {vA}, {vB}")
    a(f"v_max_f32 {vA}, {vA}, {vB}")
    for i in range(4): a(f"v_sub_f32 {v(SC+i)}, {v(SC+i)}, {vA}")
    for i in range(4): a(f"v_mul_f32 {v(SC+i)}, {t0}, {v(SC+i)}")
    for i in range(4): a(f"v_exp_f32 {v(SC+i)}, {v(SC+i)}")
    a(f"v_add_f32 {vB}, {v(SC)}, {v(SC+1)}")
    a(f"v_add_f32 {v(Y)}, {v(SC+2)}, {v(SC+3)}")
    a(f"v_add_f32 {vB}, {vB}, {v(Y)}")
    for i in range(2): a(f"v_cvt_pk_bf16_f32 {v(XO+i)}, {v(SC+i)}, {v(SC+i)}")
    a(f"v_add_f32_dpp {vB}, {vB}, {vB} row_half_mirror row_mask:0xf bank_mask:0xf")
    a(f"v_mov_b32 {v(Y)}, {vB}")
    for i in range(2, 4): a(f"v_cvt_pk_bf16_f32 {v(XO+i)}, {v(SC+i)}, {v(SC+i)}")
    a(f"v_permlane32_swap_b32 {vB}, {v(Y)}")
    a(f"v_add_f32 {vB}, {vB}, {v(Y)}")
    a(f"v_mov_b32 {v(Y)}, {vB}")
    a(f"v_permlane16_swap_b32 {vB}, {v(Y)}")
    a(f"v_add_f32 {vB}, {vB}, {v(Y)}")
    a(f"ds_write2_b32 {v(Y+2)}, {vA}, {vB} offset0:{L_M//4} offset1:{L_L//4}")
    a("s_waitcnt lgkmcnt(0)")
    a("s_barrier")
    stamp(7)
    a(f"s_lshl_b32 {t0}, {sW}, 10")
    a(f"v_add_u32 {vA}, {t0}, {vV}")
    def pbuild(i):
        for t in range(4):
            if (t >> 1) == (i >> 2): a(f"v_and_b32 {v(KD+4*i+t)}, {v(XO+(i&3))}, {vPM[t]}")
            else: a(f"v_and_b32_dpp {v(KD+4*i+t)}, {v(XO+(i&3))}, {vPM[t]} row_half_mirror row_mask:0xf bank_mask:0xf")
    upto("V", 0)
    for i in range(8): pbuild(i)
    for i in range(8):
        upto("V", i)
        a(f"v_mfma_f32_16x16x32_bf16 {vr(ACC,4)}, {vr(KD+4*i,4)}, {vr(VD+4*i,4)}, {'0' if i==0 else vr(ACC,4)}")
    stamp(8)
    a(f"ds_write_b128 {vA}, {vr(ACC,4)} offset:{L_R4}")
    while st["n"] < len(seq): emit(st["n"]); st["n"] += 1
    a("s_waitcnt lgkmcnt(0)")
    a("s_barrier")
    a(f"s_cmp_eq_u32 {sType}, 3")
    a("s_cbranch_scc1 L_reduce")

    a("s_waitcnt vmcnt(2)")
    a("L_term:")
    perms(SD, WT)
    a(f"s_mov_b32 {sCnt}, {spin}")
    a("s_waitcnt vmcnt(0)")
    a("L_auxchk:")
    tagcheck(TM, 8, vB)
    a("s_cbranch_vccz L_auxok")
    a(f"buffer_load_dwordx4 {vr(TM,4)}, {vAux}, s[20:23], {sAux0} offen sc1")
    a(f"buffer_load_dwordx4 {vr(TM+4,4)}, {vAux}, s[20:23], {sAux1} offen sc1")
    a(f"s_sub_u32 {sCnt}, {sCnt}, 1")
    a("s_waitcnt vmcnt(0)")
    a("s_cbranch_scc0 L_auxchk")
    a("L_auxok:")
    stamp(9)
    a(f"s_cmp_eq_u32 {sType}, 1")
    a("s_cbranch_scc1 L_term_wo")
    c0 = -2 * math.sqrt(2 / math.pi) * LOG2E; c1 = c0 * 0.044715
    a(f"s_mov_b32 {t0}, {hx(c1)}")
    a(f"v_mov_b32 {vA}, {hx(c0)}")
    for i in range(8): a(f"v_and_b32 {v(TM+i)}, 0xffff0000, {v(TM+i)}")
    for i in range(4): a(f"v_mul_f32 {v(Y+i)}, {v(TM+i)}, {v(TM+i)}")
    for i in range(4): a(f"v_fma_f32 {v(Y+i)}, {v(Y+i)}, {t0}, {vA}")
    for i in range(4): a(f"v_mul_f32 {v(Y+i)}, {v(Y+i)}, {v(TM+i)}")
    for i in range(4): a(f"v_exp_f32 {v(Y+i)}, {v(Y+i)}")
    for i in range(4): a(f"v_add_f32 {v(Y+i)}, 1.0, {v(Y+i)}")
    for i in range(4): a(f"v_rcp_f32 {v(Y+i)}, {v(Y+i)}")
    for i in range(4): a(f"v_mul_f32 {v(Y+i)}, {v(Y+i)}, {v(TM+i)}")
    for i in range(4): rnd(v(Y+i), v(Y+i))
    for i in range(4): a(f"v_mul_f32 {v(Y+i)}, {v(Y+i)}, {v(TM+4+i)}")
    a(f"v_cvt_pk_bf16_f32 {v(TM)}, {v(Y)}, {v(Y+1)}")
    a(f"v_cvt_pk_bf16_f32 {v(TM+1)}, {v(Y+2)}, {v(Y+3)}")
    xoperands(v(TM), v(TM+1), (0, 1))
    for i in range(16): a(f"v_mov_b32 {v(ACC+i)}, 0")
    a(f"s_cmp_eq_u32 {sType}, 0")
    a("s_cbranch_scc1 L_term_u0")
    perms(SD+16, KD); mfmas(KD, XO+4, False)
    a("L_term_u0:")
    a("s_branch L_term_fin")
    a("L_term_wo:")
    OG = KD
    a(f"buffer_load_dwordx4 {vr(OG,4)}, {vOG}, s[20:23], {sOG} offen sc1")
    a(f"buffer_load_dwordx4 {vr(OG+4,4)}, {vOG}, s[20:23], {sOG} offen offset:1024 sc1")
    for i in (0, 1, 4, 5): a(f"v_and_b32 {v(TM+i)}, {sM}, {v(TM+i)}")
    a(f"v_max_f32 {vA}, {v(TM)}, {v(TM+4)}")
    a(f"s_mov_b32 {t0}, {hx(LOG2E)}")
    a(f"v_max_f32_dpp {vA}, {vA}, {vA} quad_perm:[1,0,3,2] row_mask:0xf bank_mask:0xf")
    a(f"v_sub_f32 {v(TM)}, {v(TM)}, {vA}")
    a(f"v_sub_f32 {v(TM+4)}, {v(TM+4)}, {vA}")
    a(f"v_mul_f32 {v(TM)}, {t0}, {v(TM)}")
    a(f"v_mul_f32 {v(TM+4)}, {t0}, {v(TM+4)}")
    a(f"v_exp_f32 {v(TM)}, {v(TM)}")
    a(f"v_exp_f32 {v(TM+4)}, {v(TM+4)}")
    a(f"v_mul_f32 {vA}, {v(TM)}, {v(TM+1)}")
    a(f"v_fmac_f32 {vA}, {v(TM+4)}, {v(TM+5)}")
    a(f"v_add_f32_dpp {vA}, {vA}, {vA} quad_perm:[1,0,3,2] row_mask:0xf bank_mask:0xf")
    a(f"v_rcp_f32 {vA}, {vA}")
    for i in range(16): a(f"v_mov_b32 {v(ACC+i)}, 0")
    a(f"v_mul_f32 {v(TM)}, {v(TM)}, {vA}")
    a(f"v_mul_f32 {v(TM+4)}, {v(TM+4)}, {vA}")
    stamp(10)
    a(f"s_mov_b32 {sCnt}, {spin}")
    a("s_waitcnt vmcnt(0)")
    a("L_ochk:")
    tagcheck(OG, 8, vB)
    a("s_cbranch_vccz L_ook")
    a(f"buffer_load_dwordx4 {vr(OG,4)}, {vOG}, s[20:23], {sOG} offen sc1")
    a(f"buffer_load_dwordx4 {vr(OG+4,4)}, {vOG}, s[20:23], {sOG} offen offset:1024 sc1")
    a(f"s_sub_u32 {sCnt}, {sCnt}, 1")
    a("s_waitcnt vmcnt(0)")
    a("s_cbranch_scc0 L_ochk")
    a("L_ook:")
    for i in range(8): a(f"v_and_b32 {v(OG+i)}, {sM}, {v(OG+i)}")
    for i in range(4): a(f"v_mul_f32 {v(OG+i)}, {v(OG+i)}, {v(TM)}")
    for i in range(4): a(f"v_fmac_f32 {v(OG+i)}, {v(OG+4+i)}, {v(TM+4)}")
    for i in range(4): a(f"v_add_f32_dpp {v(OG+i)}, {v(OG+i)}, {v(OG+i)} quad_perm:[1,0,3,2] row_mask:0xf bank_mask:0xf")
    a(f"v_cvt_pk_bf16_f32 {v(TM)}, {v(OG)}, {v(OG+1)}")
    a(f"v_cvt_pk_bf16_f32 {v(TM+1)}, {v(OG+2)}, {v(OG+3)}")
    for k, (src, mk) in enumerate(((TM, vM0), (TM+1, vM0), (TM, vM1), (TM+1, vM1))):
        a(f"v_and_b32 {v(XO+k)}, {v(src)}, {mk}")
    a("L_term_fin:")
    stamp(11)
    mfmas(WT, XO, False)
    a(f"s_lshl_b32 {t0}, {sW}, 10")
    a(f"v_add_u32 {vA}, {t0}, {vV}")
    densify(TM)
    a(f"s_cmp_eq_u32 {sW}, 8")
    a("s_cbranch_scc1 L_pub_fin")
    a(f"ds_write_b128 {vA}, {vr(TM,4)} offset:{L_R5}")
    a("s_waitcnt lgkmcnt(0)")
    a("s_barrier")
    a("s_branch L_done")

    def lds_sum(off, fma=None):
        for w in range(8): a(f"ds_read_b128 {vr(KD+4*w,4)}, {vV} offset:{off+1024*w}")
        for w in range(8):
            a(f"s_waitcnt lgkmcnt({7-w})")
            if fma is None:
                a(f"v_pk_add_f32 {vr(TM,2)}, {vr(TM,2)}, {vr(KD+4*w,2)}")
                a(f"v_pk_add_f32 {vr(TM+2,2)}, {vr(TM+2,2)}, {vr(KD+4*w+2,2)}")
            else:
                sb = w & 1
                for k in (0, 2):
                    if w == 0: a(f"v_pk_mul_f32 {vr(fma+8+k,2)}, {vr(KD+4*w+k,2)}, {vr(fma+(w&~1),2)} op_sel:[0,{sb}] op_sel_hi:[1,{sb}]")
                    else: a(f"v_pk_fma_f32 {vr(fma+8+k,2)}, {vr(KD+4*w+k,2)}, {vr(fma+(w&~1),2)}, {vr(fma+8+k,2)} op_sel:[0,{sb},0] op_sel_hi:[1,{sb},1]")
    a("L_pub_strip:")
    a(f"v_bfe_u32 {vA}, {vL}, 1, 2")
    a(f"v_mul_u32_u24 {vA}, {BST}, {vA}")
    a(f"v_lshrrev_b32 {vB}, 3, {vL}")
    a(f"v_lshl_add_u32 {vA}, {vB}, 5, {vA}")
    a(f"v_and_b32 {vB}, 1, {vL}")
    a(f"v_lshl_add_u32 {vA}, {vB}, 4, {vA}")
    a("s_barrier")
    lds_sum(L_R2)
    for k in range(4): rnd(v(TM+k), v(TM+k))
    addtags(TM)
    a(f"buffer_store_dwordx4 {vr(TM,4)}, {vA}, s[20:23], {sPubS} offen sc1")
    stamp(4)
    a("L_pub_q:")
    F = VD
    a(f"s_mov_b32 {sCnt}, {spin}")
    a("L_qpoll:")
    a(f"buffer_load_dwordx4 {vr(F,4)}, {vV}, s[20:23], {sQ} offen sc1")
    a(f"s_sub_u32 {sCnt}, {sCnt}, 1")
    a("s_waitcnt vmcnt(0)")
    a("s_cbranch_scc1 L_qok")
    tagcheck(F, 4, vB)
    a("s_cbranch_vccnz L_qpoll")
    a("L_qok:")
    stamp(5)
    a(f"v_perm_b32 {v(F)}, {v(F+1)}, {v(F)}, {sSelHi}")
    a(f"v_perm_b32 {v(F+1)}, {v(F+3)}, {v(F+2)}, {sSelHi}")
    a(f"v_lshlrev_b32 {vB}, 3, {vL}")
    a(f"ds_write_b64 {vB}, {vr(F,2)} offset:{L_Q}")
    a("s_waitcnt lgkmcnt(0)")
    a("s_barrier")
    a(f"v_lshrrev_b32 {vA}, 5, {vL}")
    a(f"v_lshlrev_b32 {vB}, 5, {vA}")
    a("s_barrier")
    a(f"ds_read_b128 {vr(F,4)}, {vB} offset:{L_M}")
    a(f"ds_read_b128 {vr(F+4,4)}, {vB} offset:{L_M+16}")
    a(f"ds_read_b128 {vr(F+16,4)}, {vB} offset:{L_L}")
    a(f"ds_read_b128 {vr(F+20,4)}, {vB} offset:{L_L+16}")
    a(f"s_mov_b32 {t0}, {hx(LOG2E)}")
    a(f"s_lshl_b32 {t1}, {sU}, 7")
    a(f"s_add_u32 {t1}, {t1}, {STB}")
    a(f"v_lshlrev_b32 {vB}, 4, {vA}")
    a("s_waitcnt lgkmcnt(0)")
    Z = F + 12
    a(f"v_max3_f32 {v(Z)}, {v(F)}, {v(F+1)}, {v(F+2)}")
    a(f"v_max3_f32 {v(Z)}, {v(Z)}, {v(F+3)}, {v(F+4)}")
    a(f"v_max3_f32 {v(Z)}, {v(Z)}, {v(F+5)}, {v(F+6)}")
    a(f"v_max_f32 {v(Z)}, {v(Z)}, {v(F+7)}")
    for w in range(8): a(f"v_sub_f32 {v(F+w)}, {v(F+w)}, {v(Z)}")
    for w in range(8): a(f"v_mul_f32 {v(F+w)}, {t0}, {v(F+w)}")
    for w in range(8): a(f"v_exp_f32 {v(F+w)}, {v(F+w)}")
    a(f"v_mul_f32 {v(Z+1)}, {v(F)}, {v(F+16)}")
    for w in range(1, 8): a(f"v_fmac_f32 {v(Z+1)}, {v(F+w)}, {v(F+16+w)}")
    addtags(Z)
    a("s_mov_b32 exec_lo, 1")
    a("s_mov_b32 exec_hi, 1")
    a(f"buffer_store_dwordx4 {vr(Z,4)}, {vB}, s[20:23], {t1} offen sc1")
    a("s_mov_b64 exec, -1")
    stamp(7)
    a(f"s_bitcmp1_b32 {sType}, 0")
    a("s_cbranch_scc1 L_pub_noT")
    a(f"buffer_load_dwordx4 {vr(TM,4)}, {vAux}, s[20:23], {sAux0} offen sc1")
    a(f"buffer_load_dwordx4 {vr(TM+4,4)}, {vAux}, s[20:23], {sAux1} offen sc1")
    for i in range(4): tload(i, sT)
    a("L_pub_noT:")
    a(f"v_and_b32 {vB}, 15, {vL}")
    a(f"v_lshl_add_u32 {vA}, {vA}, 4, {vB}")
    a(f"v_bfe_u32 {vB}, {vL}, 4, 1")
    a(f"v_lshl_add_u32 {vA}, {vA}, 1, {vB}")
    a(f"v_lshlrev_b32 {vA}, 4, {vA}")
    a(f"s_lshl_b32 {t1}, {sU}, 10")
    a(f"s_add_u32 {t1}, {t1}, {OB}")
    a("s_barrier")
    lds_sum(L_R4, fma=F)
    addtags(F+8)
    a(f"buffer_store_dwordx4 {vr(F+8,4)}, {vA}, s[20:23], {t1} offen sc1")
    stamp(8)
    a(f"s_cmp_eq_u32 {sType}, 3")
    a("s_cbranch_scc1 L_reduce")
    a(f"s_cmp_lg_u32 {sType}, 1")
    a("s_waitcnt vmcnt(1)")
    a("s_cbranch_scc1 L_term")
    for k in range(4): a(f"v_mov_b32 {v(TM+k)}, 0")
    a("L_pub_fin:")
    a("s_barrier")
    lds_sum(L_R5)
    addtags(TM)
    a(f"buffer_store_dwordx4 {vr(TM,4)}, {vV}, s[20:23], {sPubP} offen sc1")
    stamp(12)
    a("s_branch L_done")

    a("L_reduce:")
    R = SD
    a("s_waitcnt vmcnt(0)")
    a(f"v_lshrrev_b32 {vA}, 3, {vL}")
    a(f"v_lshlrev_b32 {vA}, 10, {vA}")
    a(f"v_and_b32 {vB}, 7, {vL}")
    a(f"v_lshl_add_u32 {vA}, {vB}, 4, {vA}")
    a(f"s_lshl_b32 {t0}, {sW}, 15")
    a(f"s_lshl_b32 {t1}, {sX}, 7")
    a(f"s_add_u32 {t0}, {t0}, {t1}")
    a(f"s_add_u32 {t0}, {t0}, {PB}")
    a(f"s_add_u32 {t1}, {t0}, 8192")
    a(f"s_add_u32 {t2}, {t0}, 16384")
    a(f"s_add_u32 {t3}, {t0}, 24576")
    a(f"s_cmp_lt_u32 {sW}, 5")
    a(f"s_cselect_b32 {t3}, {t2}, {t3}")
    a(f"s_cselect_b32 {sAux0}, 0, {sM}")
    a(f"v_bfe_u32 {vB}, {vL}, 1, 2")
    a(f"v_mul_u32_u24 {vB}, 1152, {vB}")
    a(f"v_and_b32 {vK}, 1, {vL}")
    a(f"v_lshl_add_u32 {vB}, {vK}, 3, {vB}")
    a(f"v_lshrrev_b32 {vK}, 4, {vL}")
    a(f"v_lshl_add_u32 {vK}, {vK}, 1, {vB}")
    a(f"s_lshl_b32 {sAux1}, {sW}, 3")
    a(f"s_add_u32 {sAux1}, {sAux1}, {sX}")
    a(f"s_lshl_b32 {sAux1}, {sAux1}, 4")
    a(f"buffer_load_ushort {vT}, {vK}, s[24:27], {sAux1} offen")
    a(f"s_mov_b32 {sCnt}, {spin}")
    a("L_rpoll:")
    for t, so in enumerate((t0, t1, t2, t3)):
        a(f"buffer_load_dwordx4 {vr(R+4*t,4)}, {vA}, s[20:23], {so} offen sc1")
    a(f"s_sub_u32 {sCnt}, {sCnt}, 1")
    a("s_cbranch_scc1 L_rok")
    a("s_waitcnt vmcnt(0)")
    tagcheck(R, 16, vB)
    a("s_cbranch_vccnz L_rpoll")
    a("L_rok:")
    a("s_waitcnt vmcnt(0)")
    stamp(11)
    for i in range(16): a(f"v_and_b32 {v(R+i)}, {sM if i<12 else sAux0}, {v(R+i)}")
    for i in (0, 2, 8, 10): a(f"v_pk_add_f32 {vr(R+i,2)}, {vr(R+i,2)}, {vr(R+i+4,2)}")
    for i in (0, 1, 8, 9): a(f"v_permlane32_swap_b32 {v(R+i)}, {v(R+i+2)}")
    for i in (0, 8): a(f"v_pk_add_f32 {vr(R+i,2)}, {vr(R+i,2)}, {vr(R+i+2,2)}")
    for i in (0, 8): a(f"v_permlane16_swap_b32 {v(R+i)}, {v(R+i+1)}")
    for i in (8, 0): a(f"v_add_f32 {v(R+i)}, {v(R+i)}, {v(R+i+1)}")
    for i in (8, 0): a(f"v_add_f32_dpp {v(R+i)}, {v(R+i)}, {v(R+i)} row_ror:8 row_mask:0xf bank_mask:0xf")
    rnd(v(R+8), v(R+8)); rnd(v(R), v(R))
    a(f"v_mul_f32 {vA}, {hx(-LOG2E)}, {v(R+8)}")
    a(f"v_exp_f32 {vA}, {vA}")
    a(f"v_lshlrev_b32 {vT}, 16, {vT}")
    a(f"v_add_f32 {vA}, 1.0, {vA}")
    a(f"v_rcp_f32 {vA}, {vA}")
    a(f"v_mul_f32 {vA}, {vA}, {v(R+8)}")
    rnd(vA, vA)
    a(f"v_mul_f32 {vA}, {vA}, {v(R)}")
    rnd(vA, vA)
    a(f"v_add_f32 {vA}, {vA}, {vT}")
    a(f"v_cvt_pk_bf16_f32 {vA}, {vA}, {vA}")
    a("s_mov_b32 exec_lo, 0x00ff00ff")
    a("s_mov_b32 exec_hi, 0x00ff00ff")
    a(f"buffer_store_short {vA}, {vK}, s[28:31], {sAux1} offen")
    stamp(12)
    a(f"s_cmp_lg_u32 {sAux1}, 0")
    a("s_cbranch_scc1 L_done")
    a("s_mov_b64 exec, 1")
    a(f"v_mov_b32 {vA}, {sTag}")
    a(f"v_mov_b32 {vB}, 0")
    a(f"buffer_store_dword {vA}, {vB}, s[20:23], 0 offen sc1")
    a("L_done:")
    if amp:
        aj, aw, ac, a0 = amp
        a(f"s_cmp_lg_u32 s2, {aj*8}")
        a("s_cbranch_scc1 L_end")
        a(f"s_cmp_lg_u32 {sW}, {aw}")
        a("s_cbranch_scc1 L_end")
        a("s_waitcnt vmcnt(0)")
        stamp(13)
        a("s_waitcnt lgkmcnt(0)")
        a(f"s_sub_u32 {t0}, s{60+2*ac}, s{60+2*a0}")
        a(f"s_min_u32 {t0}, {t0}, 10000")
        a(f"s_mul_i32 {t0}, {t0}, 10")
        a("L_amp:")
        a("s_memrealtime s[58:59]")
        a("s_waitcnt lgkmcnt(0)")
        a(f"s_sub_u32 s58, s58, s86")
        a(f"s_cmp_lt_u32 s58, {t0}")
        a("s_cbranch_scc1 L_amp")
    elif stamps:
        a("s_mov_b64 exec, -1")
        a("s_waitcnt vmcnt(0)")
        stamp(13)
        a("s_waitcnt lgkmcnt(0)")
        a(f"s_mul_i32 {t0}, s2, 9")
        a(f"s_add_u32 {t0}, {t0}, {sW}")
        a(f"s_lshl_b32 {t0}, {t0}, 6")
        a(f"s_add_u32 {t0}, {t0}, {STAMP}")
        a(f"v_mov_b32 {vA}, 0")
        for i in range(nst[0]): a(f"v_writelane_b32 {vA}, s{60+2*i}, {i}")
        a(f"v_lshlrev_b32 {vB}, 2, {vL}")
        a("s_mov_b64 exec, 0xffff")
        a(f"buffer_store_dword {vA}, {vB}, s[20:23], {t0} offen")
    a("L_end:")
    a("s_endpgm")
    body, n = hazard.fix(a.text(), verbose=False)
    txt = HEADER + f"; @launch grid=(256,1,1) block=(576,1,1) lds={L_END}\n" + file_begin() + kernel_begin(name) + body + kernel_desc(name, 168, sgpr=96, extra="  .amdhsa_float_denorm_mode_32 3\n")
    open(fname, "w").write(txt)
    print(fname, "nops inserted", n)

if __name__ == "__main__":
    gen("v2.s")
    gen("v2_st.s", stamps=True)
    gen("v2_def.s", policy="")
    gen("v2_w4.s", W=4)
    gen("v2_w4_st.s", W=4, stamps=True)
    gen("amp_r12.s", W=4, amp=(31, 0, 12, 0))
    gen("amp_r8.s", W=4, amp=(31, 0, 8, 0))
    gen("amp_r14.s", W=4, amp=(31, 0, 14, 0))
    gen("amp_r4.s", W=4, amp=(31, 0, 4, 0))
    gen("amp_r5.s", W=4, amp=(31, 0, 5, 0))
    gen("amp_r6.s", W=4, amp=(31, 0, 6, 0))
```
